```python
import torch

def _softmax(x, axis=-1):
    return torch.softmax(x, dim=axis)
def _gelu(x):
    return torch.nn.functional.gelu(x, approximate="tanh")
def _silu(x):
    return torch.nn.functional.silu(x)
def _sigmoid(x):
    return torch.sigmoid(x)
def _layernorm(x, axis=-1, eps=1e-5):
    m = x.mean(dim=axis, keepdim=True)
    v = x.var(dim=axis, keepdim=True, unbiased=False)
    return (x - m) / torch.sqrt(v + eps)
def _scatter_add(tgt, idx, src, axis=0):
    return tgt.clone().index_add_(axis, idx, src)
def _segment_sum(src, seg, n):
    out = torch.zeros((n,) + src.shape[1:], dtype=src.dtype)
    return out.index_add_(0, seg, src)
def _pad(x, pw):
    flat = tuple(v for pair in reversed(pw) for v in pair)
    return torch.nn.functional.pad(x, flat)

kernel_name = 'recurrent_scan__sliding_block_cached__glu_gated_swiglu__decode'

def setup_inputs():

    _w = (lambda a: (lambda t: t.to(torch.bfloat16) if t.is_floating_point() else t)(torch.as_tensor(a)))
    def _A_setup():
        B, Sq, D = 2, 1, 576
        Hq, Hkv, Sk, Dh = 32, 16, 32768, 128
        assert Hq % Hkv == 0, (Hq, Hkv)
        return {
            "x": _w((lambda *s: torch.randn(*s, dtype=torch.bfloat16) * 0.05)(B, Sq, D)),
            "k_cache": _w((lambda *s: torch.randn(*s, dtype=torch.bfloat16) * 3.2)(B, Hkv, Sk, Dh)),
            "v_cache": _w((lambda *s: torch.randn(*s, dtype=torch.bfloat16) * 3.2)(B, Hkv, Sk, Dh)),
            "wq": _w((lambda *s: torch.randn(*s, dtype=torch.bfloat16) * 3.2)(D, Hq * Dh) * (D ** -0.5)),
            "wo": _w((lambda *s: torch.randn(*s, dtype=torch.bfloat16) * 3.2)(Hq * Dh, D) * ((Hq * Dh) ** -0.5)),
        }
    _A_in = _A_setup()

    def _B_setup():
        B, S, D, F = 2, 1, 576, 4608
        return {
            "x": _w((lambda *s: torch.randn(*s, dtype=torch.bfloat16) * 0.05)(B, S, D)),
            "w1": _w((lambda *s: torch.randn(*s, dtype=torch.bfloat16) * 0.4)(D, F) * (2.0 / D) ** 0.5),
            "w3": _w((lambda *s: torch.randn(*s, dtype=torch.bfloat16) * 0.4)(D, F) * (2.0 / D) ** 0.5),
            "w2": _w((lambda *s: torch.randn(*s, dtype=torch.bfloat16) * 0.4)(F, D) * (2.0 / F) ** 0.5),
        }
    _B_in = _B_setup()

    return {
        "A_x": _A_in["x"],
        "A_k_cache": _A_in["k_cache"],
        "A_v_cache": _A_in["v_cache"],
        "A_wq": _A_in["wq"],
        "A_wo": _A_in["wo"],
        "B_x": _B_in["x"],
        "B_w1": _B_in["w1"],
        "B_w3": _B_in["w3"],
        "B_w2": _B_in["w2"],
    }

def reference(A_x, A_k_cache, A_v_cache, A_wq, A_wo, B_x, B_w1, B_w3, B_w2):
    def _A_ref(x, k_cache, v_cache, wq, wo):
        B, Sq, D = x.shape
        Hq, Dh = 32, 128
        Hkv, Sk = k_cache.shape[1], k_cache.shape[2]
        W = min(4096, max(256, Sk // 4))
        rep = Hq // Hkv
        q = (lambda x, *d: x.permute(*d))((x @ wq).reshape(B, Sq, Hq, Dh), 0, 2, 1, 3)
        k = (lambda x, n, axis: torch.repeat_interleave(x, n, dim=axis))(k_cache[:, :, Sk - W:, :], rep, axis=1)
        v = (lambda x, n, axis: torch.repeat_interleave(x, n, dim=axis))(v_cache[:, :, Sk - W:, :], rep, axis=1)
        scores = torch.einsum("bhqd,bhkd->bhqk", q, k) * (Dh ** -0.5)
        p = _softmax(scores, axis=-1)
        o = torch.einsum("bhqk,bhkd->bhqd", p, v)
        return (lambda x, *d: x.permute(*d))(o, 0, 2, 1, 3).reshape(B, Sq, Hq * Dh) @ wo

    def _B_ref(x, w1, w3, w2):
        gate = torch.einsum("bsd,df->bsf", x, w1)
        up = torch.einsum("bsd,df->bsf", x, w3)
        h = _silu(gate) * up
        out = torch.einsum("bsf,fd->bsd", h, w2)
        return out

    x = A_x
    xn = _layernorm(x, axis=-1)
    s = _A_ref(xn, A_k_cache, A_v_cache, A_wq, A_wo)
    g = _silu(_B_ref(xn, B_w1, B_w3, B_w2))
    return x + s * g
```

```python
import re

REG_RE = re.compile(r'^(-?)(abs\()?([vas])(?:(\d+)|\[(\d+):(\d+)\])\)?$')

def regs_of(tok):
    t = tok.strip()
    if t in ('vcc',): return {('s','vcc_lo'),('s','vcc_hi')}
    if t == 'vcc_lo': return {('s','vcc_lo')}
    if t == 'vcc_hi': return {('s','vcc_hi')}
    if t == 'exec': return {('s','exec_lo'),('s','exec_hi')}
    if t == 'm0': return {('s','m0')}
    m = REG_RE.match(t)
    if not m: return set()
    k = m.group(3)
    if m.group(4) is not None: return {(k,int(m.group(4)))}
    return {(k,i) for i in range(int(m.group(5)), int(m.group(6))+1)}

TRANS = ('v_exp_f32','v_log_f32','v_rcp_f32','v_rsq_f32','v_sqrt_f32','v_sin_f32','v_cos_f32','v_rcp_iflag_f32')

class Ins:
    __slots__=('text','op','cls','wr','rd','dpp_rd','srcC','srcAB','is_label','label','target','store_data','nopstates','lane_sel')
    def __init__(self, text):
        self.text=text; self.is_label=False; self.label=None; self.target=None
        self.wr=set(); self.rd=set(); self.dpp_rd=set(); self.srcC=set(); self.srcAB=set(); self.store_data=set()
        self.cls='other'; self.nopstates=1; self.op=''
        t=text.split(';')[0].strip()
        if not t or t.startswith('.'):
            self.cls='dir'; self.nopstates=0; return
        if t.endswith(':'):
            self.is_label=True; self.label=t[:-1]; self.cls='label'; self.nopstates=0; return
        parts=t.split(None,1); op=parts[0]; self.op=op
        rest=parts[1] if len(parts)>1 else ''
        ops=[]; cur=''; depth=0
        for ch in rest:
            if ch=='[': depth+=1
            if ch==']': depth-=1
            if ch==',' and depth==0: ops.append(cur.strip()); cur=''
            else: cur+=ch
        if cur.strip(): ops.append(cur.strip())
        mods=''
        if ops:
            last=ops[-1].split(None,1)
            ops[-1]=last[0]
            if len(last)>1: mods=last[1]
        R=lambda i: regs_of(ops[i]) if i<len(ops) else set()
        if op=='s_nop':
            self.cls='nop'; self.nopstates=int(ops[0],0)+1; return
        if op.startswith('s_cbranch') or op=='s_branch':
            self.cls='branch'; self.target=ops[0]
            if 'vcc' in op: self.rd=regs_of('vcc')
            if 'exec' in op: self.rd=regs_of('exec')
            return
        if op.startswith('v_mfma'):
            self.cls='mfma'; self.wr=R(0); self.srcAB=R(1)|R(2); self.srcC=R(3); self.rd=self.srcAB|self.srcC; return
        if op.startswith('v_'):
            self.cls='valu'
            isdpp = ('quad_perm' in mods) or ('row_' in mods) or op.endswith('_dpp')
            if op.startswith('v_permlane'):
                self.cls='permlane'; self.wr=R(0)|R(1); self.rd=R(0)|R(1); return
            if op.startswith('v_readfirstlane') or op.startswith('v_readlane'):
                self.cls='readlane'; self.wr=R(0); self.rd=R(1)|R(2); return
            if op.startswith('v_cmp'):
                self.wr=R(0); self.rd=set().union(*[R(i) for i in range(1,len(ops))]); return
            self.wr=R(0)
            srcs=range(1,len(ops))
            if op.startswith(('v_add_co','v_sub_co','v_addc_co','v_subb_co','v_subrev_co','v_div_scale')):
                self.wr|=R(1); srcs=range(2,len(ops))
            self.rd=set().union(*[R(i) for i in srcs]) if len(ops)>1 else set()
            if op.startswith(('v_fmac','v_mac','v_pk_fmac','v_dot2c','v_writelane')): self.rd|=R(0)
            if op.startswith('v_cndmask') and len(ops)==3: self.rd|=regs_of('vcc')
            if isdpp:
                self.dpp_rd=R(1)
                self.rd|=R(0)
            if op.split('_e')[0] in TRANS or op in TRANS: self.cls='trans'
            return
        if op.startswith('buffer_') or op.startswith('global_'):
            self.cls='vmem'
            isbuf=op.startswith('buffer_')
            if 'load' in op or ('atomic' in op and 'sc0' in mods):
                if 'lds' in mods.split():
                    self.rd=set().union(*[R(i) for i in range(len(ops))])
                else:
                    self.wr=R(0); self.rd=set().union(*[R(i) for i in range(1,len(ops))])
            else:
                self.rd=set().union(*[R(i) for i in range(len(ops))])
                d = R(0) if isbuf else R(1)
                if op.endswith(('x3','x4')): self.store_data=d
            return
        if op.startswith('ds_'):
            self.cls='ds'
            if op.startswith(('ds_read','ds_bpermute','ds_permute','ds_swizzle')):
                self.wr=R(0); self.rd=set().union(*[R(i) for i in range(1,len(ops))])
            else:
                self.rd=set().union(*[R(i) for i in range(len(ops))])
            return
        if op.startswith('s_'):
            self.cls='salu'
            if op in ('s_waitcnt','s_barrier','s_endpgm','s_setprio','s_sleep'): return
            if op.startswith('s_cmp') or op.startswith('s_bitcmp'):
                self.rd=set().union(*[R(i) for i in range(len(ops))]); return
            if op.startswith('s_load') or op.startswith('s_memtime') or op.startswith('s_memrealtime') or op.startswith('s_getpc'):
                self.wr=R(0); self.rd=set().union(*[R(i) for i in range(1,len(ops))]) if len(ops)>1 else set(); return
            self.wr=R(0); self.rd=set().union(*[R(i) for i in range(1,len(ops))]) if len(ops)>1 else set()
            if 'saveexec' in op: self.wr|=regs_of('exec'); self.rd|=regs_of('exec')
            return
        raise ValueError("unknown instruction: "+text)

def isv(r): return r[0] in 'va'
VALU_LIKE=('valu','trans','permlane','readlane')

def required(p, c):
    need=0
    pv = p.cls in VALU_LIKE
    pw_v = {r for r in p.wr if isv(r)}
    pw_s = {r for r in p.wr if r[0]=='s'}
    if pv:
        if c.cls=='mfma' and pw_v & c.rd: need=max(need,2)
        if c.dpp_rd and pw_v & c.dpp_rd: need=max(need,2)
        if c.cls=='permlane' and pw_v & c.rd: need=max(need,2)
        if c.cls=='readlane' and pw_v & c.rd: need=max(need,1)
        if p.cls=='trans' and c.cls in VALU_LIKE+('mfma',) and pw_v & c.rd: need=max(need,1)
        if pw_s:
            if c.cls in VALU_LIKE and pw_s & c.rd: need=max(need, 4 if c.cls=='readlane' else 2)
            if c.cls=='vmem' and pw_s & c.rd: need=max(need,5)
            if c.cls in ('salu',) and pw_s & c.rd: need=max(need,1)
    if p.cls=='mfma':
        D=p.wr
        if c.cls=='mfma':
            if D & c.srcAB: need=max(need,8)
            if D & c.srcC and c.srcC!=D: need=max(need,6)
            if D & c.wr and c.srcC!=D: need=max(need,8)
        elif c.cls in VALU_LIKE:
            if D & (c.rd|c.wr): need=max(need,8)
            if p.srcC & c.wr: need=max(need,3)
        elif c.cls in ('vmem','ds'):
            if D & (c.rd|c.wr): need=max(need,8)
    if p.store_data and c.cls in VALU_LIKE+('mfma',) and p.store_data & c.wr: need=max(need,2)
    if p.store_data and c.cls in ('vmem','ds') and p.store_data & c.wr: need=max(need,1)
    if p.cls=='salu' and ('s','m0') in p.wr and c.cls=='vmem' and 'lds' in c.text: need=max(need,1)
    return need

MAXLOOK=10

def insert_nops(lines):
    ins=[Ins(t) for t in lines]
    sources={}
    for i,x in enumerate(ins):
        if x.cls=='branch': sources.setdefault(x.target,[]).append(i)
    out=[]
    pos={}
    total_nops=0
    def look(start_list_idx, lst, c, dist, seen, depth):
        need=0; i=start_list_idx
        while i>=0 and dist<MAXLOOK:
            x=lst[i]
            if x.is_label:
                for s in sources.get(x.label,[]):
                    key=(x.label,s)
                    if key in seen or depth>3: continue
                    if s in pos:
                        need=max(need, look(pos[s]-1 if False else pos[s], out, c, dist, seen|{key}, depth+1))
                    else:
                        need=max(need, look(s, ins, c, dist, seen|{key}, depth+1))
                i-=1; continue
            if x.cls=='dir': i-=1; continue
            if x.op in ('s_branch','s_endpgm') and i!=start_list_idx:
                break
            r=required(x,c)
            if r>dist: need=max(need,r-dist)
            dist+=x.nopstates
            i-=1
        return need
    for i,x in enumerate(ins):
        if x.cls not in ('label','dir','nop'):
            n=look(len(out)-1,out,x,0,frozenset(),0)
            while n>0:
                k=min(n,16)
                out.append(Ins(f"s_nop {k-1}")); total_nops+=1; n-=k
        pos[i]=len(out)
        out.append(x)
    return [x.text for x in out], total_nops

class Asm:
    def __init__(self):
        self.lines=[]; self.vm=[]
    def __call__(self, text):
        for l in text.split('\n'):
            l=l.strip()
            if l:
                assert not (l.startswith('buffer_') or l.startswith('global_')), "use vmop for "+l
                self.lines.append(l)
    def shadow(self, text):
        self.lines.append(text.strip())
    def vmop(self, text, role=None):
        self.lines.append(text.strip()); self.vm.append(role); return len(self.vm)-1
    def count_after(self, idx, ctx=()):
        return sum(1 for r in self.vm[idx+1:] if r is None or r in ctx)
    def waitvm(self, idx, ctx=()):
        n=min(self.count_after(idx,ctx),63)
        self.lines.append(f"s_waitcnt vmcnt({n})")
    def label(self,name): self.lines.append(name+':')
    def finish(self):
        return insert_nops(self.lines)
```

```python
import sys, json
sys.path.insert(0, 'gen')
from asmlib import Asm

KNAME = "recurrent_scan__sliding_block_cached__glu_gated_swiglu__decode_kernel"

WS_E  = 0
WS_Q  = 4096
WS_G  = WS_Q + 131072
WS_ST = WS_G + 147456
WS_O  = WS_ST + 4096
WS_S  = WS_O + 262144
WS_GP = WS_S + 589824
WS_END = WS_GP + 589824
WS_STAMP = 2 << 20
WS_DUMP  = 3 << 20
WS_NREC = 8 << 20
L_XN=0; L_S1=2560; L_Q=6656; L_ST=7168; L_WG=7296; L_H=7424; L_OR=7680; L_O=11776; L_F=11904; LDS_BYTES=12544
OOB = 0x7ff00000
NHEAVY = 208
FIN0 = 184

C_SCALE = 0x3DB504F3
C_LOG2E = 0x3FB8AA3B
C_EPS   = 0x3727C5AC
C_576   = 0x44100000
C_R576  = 0x3AE38E39

class VAlloc:
    def __init__(s, lo, hi): s.free=set(range(lo,hi)); s.hw=lo
    def alloc(s, n=1, align=1):
        if n>1 and align<2: align=2
        for b in range(0,256):
            if b%align==0 and all((b+i) in s.free for i in range(n)):
                for i in range(n): s.free.discard(b+i)
                s.hw=max(s.hw,b+n); return b
        raise RuntimeError("out of VGPRs")
    def release(s, b, n=1):
        for i in range(n):
            assert (b+i) not in s.free
            s.free.add(b+i)

def gen(D=8, P=12, NP=4, stamps=False, dump=None, timeout=100000, nt=True, codepf=True):
    a=Asm(); V=VAlloc(1,256)
    NT=" nt" if nt else ""
    v=lambda b,n=1: f"v{b}" if n==1 else f"v[{b}:{b+n-1}]"
    ar=lambda b,n=4: f"a[{b}:{b+n-1}]"
    sW=3
    SRD_K,SRD_V,SRD_W1,SRD_WO,SRD_W2,SRD_WS,SRD_X,SRD_OUT=28,32,36,40,44,48,52,56
    srd=lambda b: f"s[{b}:{b+3}]"
    sT32,sT8=62,63
    sKV=64
    sT0,sT1,sT2,sT3,sT4,sT5=66,67,68,69,70,71
    sCNT=72
    sLOG2E,sSCALE=73,74
    sB,sKVH,sSP,sCH=75,76,77,78
    sRB2,sRB=79,80
    sS1STR,sS1OFF,sS1PUB,sS1ISQ=81,82,83,84
    s4608,s9216=85,86
    sSTART,sCOUNT=87,88
    sUNIT=89
    sS1STR7=65
    STAMP0=90
    nst=[0]
    def stamp():
        if not stamps: return
        k=nst[0]; nst[0]+=1
        assert STAMP0+k<102
        a(f"s_memrealtime s[70:71]\ns_waitcnt lgkmcnt(0)\ns_mov_b32 s{STAMP0+k}, s70")
    ctx_heavy=('heavy',)

    a(f"s_cmp_ge_u32 s2, 256\ns_cbranch_scc1 L_end")
    a("s_load_dwordx16 s[4:19], s[0:1], 0\ns_load_dwordx8 s[20:27], s[0:1], 64")
    vLane=0
    vG=V.alloc(); vN=V.alloc(); vKoff=V.alloc(); vVoff=V.alloc(); vM24=V.alloc(); vRed=V.alloc()
    vSEL=[[V.alloc() for r in range(4)] for h in range(2)]
    vT=[V.alloc() for _ in range(6)]
    a(f"v_lshrrev_b32 {v(vT[0])}, 6, v0\nv_and_b32 v0, 63, v0\nv_readfirstlane_b32 s{sW}, {v(vT[0])}")
    a(f"v_lshrrev_b32 {v(vG)}, 4, v0\nv_and_b32 {v(vN)}, 15, v0\nv_lshlrev_b32 {v(vVoff)}, 4, v0")
    a(f"v_bfe_u32 {v(vT[1])}, v0, 2, 2\nv_and_b32 {v(vT[2])}, 3, v0\nv_lshlrev_b32 {v(vKoff)}, 8, {v(vT[1])}")
    a(f"v_lshl_add_u32 {v(vKoff)}, {v(vG)}, 6, {v(vKoff)}\nv_lshl_add_u32 {v(vKoff)}, {v(vT[2])}, 4, {v(vKoff)}")
    a(f"s_lshr_b32 s{sT0}, s2, 3\ns_and_b32 s{sSP}, s2, 7\ns_lshr_b32 s{sB}, s{sT0}, 4\ns_and_b32 s{sKVH}, s{sT0}, 15\ns_and_b32 s{sCH}, s2, 1\ns_lshr_b32 s{sRB2}, s2, 1")
    a(f"s_lshl_b32 s{sRB}, s{sKVH}, 1\ns_add_u32 s{sRB}, s{sRB}, s{sB}\ns_lshl_b32 s{sRB}, s{sRB}, 2\ns_lshr_b32 s{sT1}, s{sSP}, 1\ns_add_u32 s{sRB}, s{sRB}, s{sT1}")
    a(f"s_mul_i32 s{sT1}, s2, 1237\ns_lshr_b32 s{sT1}, s{sT1}, 2\ns_and_b32 s{sT1}, s{sT1}, 127")
    a(f"s_xor_b32 s{sT1}, s{sT1}, s{sW}")
    a(f"s_lshl_b32 s{sT1}, s{sT1}, 10\ns_lshl_b32 s{sKV}, s{sT0}, 23\ns_lshl_b32 s{sT2}, s{sSP}, 17\ns_add_u32 s{sKV}, s{sKV}, s{sT2}\ns_add_u32 s{sKV}, s{sKV}, 7340032\ns_or_b32 s{sKV}, s{sKV}, s{sT1}")
    a(f"s_mov_b32 s{sCNT}, {timeout}\ns_mov_b32 s{sLOG2E}, {C_LOG2E}\ns_mov_b32 s{sSCALE}, {C_SCALE}\ns_mov_b32 s{s4608}, 4608\ns_mov_b32 s{s9216}, 9216")
    a("s_waitcnt lgkmcnt(0)")
    def mksrd(d,lo,size):
        a(f"s_mov_b32 s{d}, s{lo}\ns_and_b32 s{d+1}, s{lo+1}, 0xffff\ns_mov_b32 s{d+2}, {size}\ns_mov_b32 s{d+3}, 0x20000")
    mksrd(SRD_K,6,268435456)
    mksrd(SRD_WS,26,WS_NREC)
    a(f"s_load_dword s{sT32}, s[26:27], 0")
    stamp()
    kops=[];
    def kload_text(i): return f"buffer_load_dwordx4 {ar(4*i)}, {v(vKoff)}, {srd(SRD_K)}, s{sT0} offen{NT}"
    def issue_k(i, shadow=False):
        a(f"s_xor_b32 s{sT0}, s{sKV}, {i<<12}")
        if shadow: a.shadow(kload_text(i))
        else: kops.append(a.vmop(kload_text(i)))
    def code_prefetch(shadow):
        if not codepf: return
        vD=vDummy
        a(f"s_getpc_b64 s[60:61]")
        lab=f"L_pc{'s' if shadow else 'h'}"
        a.label(lab)
        a(f"s_sub_u32 s60, s60, {lab}-{KNAME}\ns_subb_u32 s61, s61, 0")
        a(f"s_lshr_b32 s{sT1}, s2, 3\ns_lshl_b32 s{sT1}, s{sT1}, 2\ns_add_u32 s{sT1}, s{sT1}, s{sW}\ns_and_b32 s{sT1}, s{sT1}, 15\ns_lshl_b32 s{sT1}, s{sT1}, 10")
        a(f"v_add_u32 {v(vT[0])}, s{sT1}, {v(vVoff)}\nv_min_u32 {v(vT[0])}, L_codelast-{KNAME}, {v(vT[0])}")
        t=f"global_load_dwordx4 {v(vD,4)}, {v(vT[0])}, s[60:61]"
        if shadow: a.shadow(t)
        else: a.vmop(t, role='heavy')
    vDummy=V.alloc(4,2)
    a(f"s_cmp_ge_u32 s2, {NHEAVY}\ns_cbranch_scc1 L_light")

    mksrd(SRD_X,4,2304)
    a(f"s_lshr_b32 s{sT0}, s2, 1\ns_and_b32 s{sT1}, s2, 1")
    a(f"s_cmp_lt_u32 s{sT0}, 32\ns_cbranch_scc1 L_selq\ns_cmp_lt_u32 s{sT0}, 68\ns_cbranch_scc1 L_sel1")
    a(f"s_sub_u32 s{sT0}, s{sT0}, 68\ns_mov_b32 s{SRD_W1}, s18\ns_and_b32 s{SRD_W1+1}, s19, 0xffff\ns_mov_b32 s{SRD_W1+2}, 5308416\ns_mov_b32 s{sS1STR}, 9216\ns_mov_b32 s{sS1ISQ}, 0")
    a(f"s_lshl_b32 s{sS1PUB}, s{sT1}, 1\ns_add_u32 s{sS1PUB}, s{sS1PUB}, 4")
    a("s_branch L_selg")
    a.label("L_sel1")
    a(f"s_sub_u32 s{sT0}, s{sT0}, 32\ns_mov_b32 s{SRD_W1}, s16\ns_and_b32 s{SRD_W1+1}, s17, 0xffff\ns_mov_b32 s{SRD_W1+2}, 5308416\ns_mov_b32 s{sS1STR}, 9216\ns_mov_b32 s{sS1ISQ}, 0")
    a(f"s_lshl_b32 s{sS1PUB}, s{sT1}, 1")
    a.label("L_selg")
    a(f"s_add_u32 s{sS1PUB}, s{sS1PUB}, s{sW}\ns_mul_i32 s{sS1PUB}, s{sS1PUB}, 18432\ns_lshl_b32 s{sT2}, s{sT0}, 9\ns_add_u32 s{sS1PUB}, s{sS1PUB}, s{sT2}\ns_add_u32 s{sS1PUB}, s{sS1PUB}, {WS_G}")
    a("s_branch L_seld")
    a.label("L_selq")
    a(f"s_mov_b32 s{SRD_W1}, s10\ns_and_b32 s{SRD_W1+1}, s11, 0xffff\ns_mov_b32 s{SRD_W1+2}, 4718592\ns_mov_b32 s{sS1STR}, 8192\ns_mov_b32 s{sS1ISQ}, 1")
    a(f"s_lshl_b32 s{sS1PUB}, s{sT1}, 1\ns_add_u32 s{sS1PUB}, s{sS1PUB}, s{sW}\ns_lshl_b32 s{sS1PUB}, s{sS1PUB}, 15\ns_lshl_b32 s{sT2}, s{sT0}, 10\ns_add_u32 s{sS1PUB}, s{sS1PUB}, s{sT2}\ns_add_u32 s{sS1PUB}, s{sS1PUB}, {WS_Q}")
    a.label("L_seld")
    a(f"s_mov_b32 s{SRD_W1+3}, 0x20000")
    vX=[V.alloc(3,2) for _ in range(3)]
    vXo=V.alloc()
    a(f"v_lshrrev_b32 {v(vT[0])}, 5, v0\nv_and_b32 {v(vT[1])}, 31, v0\nv_mul_u32_u24 {v(vXo)}, 1152, {v(vT[0])}\nv_mad_u32_u24 {v(vXo)}, {v(vT[1])}, 12, {v(vXo)}")
    xops=[a.vmop(f"buffer_load_dwordx3 {v(vX[c],3)}, {v(vXo)}, {srd(SRD_X)}, 0 offen offset:{384*c}", role='heavy') for c in range(3)]
    vW1o=V.alloc()
    a(f"s_mul_i32 s{sT2}, s{sT1}, 288\ns_mul_i32 s{sT3}, s{sW}, 72\ns_add_u32 s{sT2}, s{sT2}, s{sT3}")
    a(f"v_lshl_add_u32 {v(vW1o)}, {v(vG)}, 1, s{sT2}\nv_mul_lo_u32 {v(vW1o)}, {v(vW1o)}, s{sS1STR}\ns_lshl_b32 s{sT3}, s{sT0}, 8")
    a(f"v_lshl_add_u32 {v(vW1o)}, {v(vN)}, 4, {v(vW1o)}\nv_add_u32 {v(vW1o)}, s{sT3}, {v(vW1o)}")
    vXA=V.alloc()
    a(f"v_lshrrev_b32 {v(vT[2])}, 3, {v(vN)}\nv_lshl_add_u32 {v(vXA)}, {v(vG)}, 1, s{sT2}\nv_lshlrev_b32 {v(vXA)}, 1, {v(vXA)}\nv_mul_u32_u24 {v(vT[2])}, 1152, {v(vT[2])}\nv_add_u32 {v(vXA)}, {v(vT[2])}, {v(vXA)}")
    vW1=[V.alloc(4,2) for _ in range(18)]
    a(f"s_mov_b32 s{sS1OFF}, 0\ns_mul_i32 s{sS1STR7}, s{sS1STR}, 7")
    w1ops=[]
    def issue_w1(t):
        w1ops.append(a.vmop(f"buffer_load_dwordx4 {v(vW1[t],4)}, {v(vW1o)}, {srd(SRD_W1)}, s{sS1OFF} offen{NT}", role='heavy'))
        if t<17: a(f"s_add_u32 s{sS1OFF}, s{sS1OFF}, s{sS1STR if t%2==0 else sS1STR7}")
    for t in range(4): issue_w1(t)
    code_prefetch(False)
    for t in range(4,P): issue_w1(t)
    nW=[P]; nK=[0]
    def pump_s1():
        if nW[0]<18: issue_w1(nW[0]); nW[0]+=1
        else: issue_k(nK[0]); nK[0]+=1
    def make_consts():
        a(f"v_mov_b32 {v(vM24)}, 0xffffff00")
        a(f"v_lshrrev_b32 {v(vT[0])}, 1, {v(vG)}\nv_and_b32 {v(vT[1])}, 1, {v(vG)}\nv_lshl_add_u32 {v(vT[1])}, {v(vN)}, 1, {v(vT[1])}\nv_lshlrev_b32 {v(vT[1])}, 4, {v(vT[1])}\nv_lshl_add_u32 {v(vRed)}, {v(vT[0])}, 9, {v(vT[1])}")
        a(f"v_and_b32 {v(vT[0])}, 1, v0\nv_bfe_u32 {v(vT[1])}, v0, 1, 2")
        a(f"v_cmp_eq_u32 vcc, 1, {v(vT[0])}")
        for hs,pat in enumerate([0x0100,0x0302]):
            a(f"v_mov_b32 {v(vT[2])}, {0x0c0c0000|pat}\nv_mov_b32 {v(vT[3])}, {(pat<<16)|0x0c0c}\nv_cndmask_b32 {v(vT[4+hs])}, {v(vT[2])}, {v(vT[3])}, vcc")
        a(f"v_mov_b32 {v(vT[2])}, 0x0c0c0c0c")
        for r in range(4):
            a(f"v_cmp_eq_u32 vcc, {r}, {v(vT[1])}")
            for hs in range(2):
                a(f"v_cndmask_b32 {v(vSEL[hs][r])}, {v(vT[2])}, {v(vT[4+hs])}, vcc")
    make_consts()
    a.waitvm(xops[2], ctx_heavy)
    stamp()
    F=[V.alloc() for _ in range(18)]
    xd=[vX[c]+k for c in range(3) for k in range(3)]
    for j,d in enumerate(xd):
        a(f"v_lshlrev_b32 {v(F[2*j])}, 16, {v(d)}\nv_and_b32 {v(F[2*j+1])}, 0xffff0000, {v(d)}")
    vS=vT[0]; vU=vT[1]; vMean=vT[2]; vMb=vT[3]
    def red32(x, op="add"):
        for m in ["quad_perm:[1,0,3,2]","quad_perm:[2,3,0,1]","row_half_mirror","row_mirror"]:
            a(f"v_{op}_f32_dpp {v(x)}, {v(x)}, {v(x)} {m} row_mask:0xf bank_mask:0xf")
        a(f"v_mov_b32 {v(vU)}, {v(x)}\nv_permlane16_swap_b32 {v(x)}, {v(vU)}\nv_{op}_f32 {v(x)}, {v(x)}, {v(vU)}")
    def div576(dst, x):
        a(f"v_mul_f32 {v(dst)}, {C_R576}, {v(x)}\nv_mov_b32 {v(vU)}, {C_576}\nv_fma_f32 {v(vU)}, -{v(dst)}, {v(vU)}, {v(x)}\nv_mul_f32 {v(vU)}, {C_R576}, {v(vU)}\nv_add_f32 {v(dst)}, {v(dst)}, {v(vU)}")
    a(f"v_add_f32 {v(vS)}, {v(F[0])}, {v(F[1])}\nv_add_f32 {v(vT[4])}, {v(F[2])}, {v(F[3])}")
    for j in range(4,18,2):
        a(f"v_add_f32 {v(vS)}, {v(vS)}, {v(F[j])}\nv_add_f32 {v(vT[4])}, {v(vT[4])}, {v(F[j+1])}")
    a(f"v_add_f32 {v(vS)}, {v(vS)}, {v(vT[4])}")
    red32(vS); div576(vMean, vS)
    a(f"v_cvt_pk_bf16_f32 {v(vMb)}, 0, {v(vMean)}")
    a(f"v_mov_b32 {v(vS)}, 0\nv_mov_b32 {v(vT[4])}, 0")
    for j in range(18):
        acc = vS if j%2==0 else vT[4]
        a(f"v_sub_f32 {v(vT[5])}, {v(F[j])}, {v(vMean)}\nv_fmac_f32 {v(acc)}, {v(vT[5])}, {v(vT[5])}")
    a(f"v_add_f32 {v(vS)}, {v(vS)}, {v(vT[4])}")
    red32(vS); div576(vMean, vS)
    a(f"v_cvt_pk_bf16_f32 {v(vMean)}, 0, {v(vMean)}\nv_add_f32 {v(vMean)}, {C_EPS}, {v(vMean)}\nv_cvt_pk_bf16_f32 {v(vMean)}, 0, {v(vMean)}")
    a(f"v_sqrt_f32 {v(vMean)}, {v(vMean)}\nv_cvt_pk_bf16_f32 {v(vMean)}, 0, {v(vMean)}\nv_rcp_f32 {v(vS)}, {v(vMean)}")
    for j in range(18):
        f=F[j]
        a(f"v_sub_f32 {v(f)}, {v(f)}, {v(vMb)}\nv_cvt_pk_bf16_f32 {v(f)}, 0, {v(f)}\nv_mul_f32 {v(vT[4])}, {v(f)}, {v(vS)}\nv_fma_f32 {v(f)}, -{v(vT[4])}, {v(vMean)}, {v(f)}\nv_fma_f32 {v(f)}, {v(f)}, {v(vS)}, {v(vT[4])}")
        if j%2==1:
            a(f"v_cvt_pk_bf16_f32 {v(F[j-1])}, {v(F[j-1])}, {v(f)}")
            jj=j//2; c,k=divmod(jj,3)
            a(f"ds_write_b32 {v(vXo)}, {v(F[j-1])} offset:{L_XN+384*c+4*k}")
    a("s_waitcnt lgkmcnt(0)")
    XA=F[:9]
    for u in range(9): a(f"ds_read_b32 {v(XA[u])}, {v(vXA)} offset:{L_XN+16*u}")
    a("s_waitcnt lgkmcnt(0)")
    a(f"s_add_u32 s{sT32}, s{sT32}, 1\ns_and_b32 s{sT8}, s{sT32}, 255")
    stamp()
    vA=[V.alloc(4,2) for _ in range(2)]
    vAcc=V.alloc(4,2)
    def abuild(dst, src, hs):
        for r in range(4): a(f"v_perm_b32 {v(dst+r)}, {v(src)}, {v(src)}, {v(vSEL[hs][r])}")
    for t in range(18):
        abuild(vA[t%2], XA[t//2], t%2)
        a.waitvm(w1ops[t], ctx_heavy)
        a(f"v_mfma_f32_16x16x32_bf16 {v(vAcc,4)}, {v(vA[t%2],4)}, {v(vW1[t],4)}, {'0' if t==0 else v(vAcc,4)}")
        pump_s1()
    k0=nK[0]
    a(f"s_lshl_b32 s{sT1}, s{sW}, 10\nv_add_u32 {v(vT[0])}, s{sT1}, {v(vRed)}")
    a(f"ds_write_b128 {v(vT[0])}, {v(vAcc,4)} offset:{L_S1}\ns_waitcnt lgkmcnt(0)\ns_barrier")
    a(f"s_cmp_ge_u32 s{sW}, 2\ns_cbranch_scc1 L_join")
    R=[vW1[i] for i in range(4)]
    a(f"s_lshl_b32 s{sT1}, s{sW}, 9\nv_lshl_add_u32 {v(vT[0])}, v0, 3, s{sT1}")
    for ww in range(4): a(f"ds_read_b64 {v(R[ww],2)}, {v(vT[0])} offset:{L_S1+1024*ww}")
    a("s_waitcnt lgkmcnt(0)")
    for k in range(2):
        a(f"v_add_f32 {v(R[0]+k)}, {v(R[0]+k)}, {v(R[1]+k)}\nv_add_f32 {v(R[2]+k)}, {v(R[2]+k)}, {v(R[3]+k)}\nv_add_f32 {v(R[0]+k)}, {v(R[0]+k)}, {v(R[2]+k)}")
    a(f"s_cmp_eq_u32 s{sS1ISQ}, 0\ns_cbranch_scc1 L_pubg")
    a(f"v_mov_b32 {v(R[1])}, {v(R[0])}\nv_mov_b32 {v(R[1]+1)}, s{sT32}\nv_mov_b32 {v(R[1]+2)}, {v(R[0]+1)}\nv_mov_b32 {v(R[1]+3)}, s{sT32}")
    a.vmop(f"buffer_store_dwordx4 {v(R[1],4)}, {v(vVoff)}, {srd(SRD_WS)}, s{sS1PUB} offen sc1", role='pub1')
    a("s_branch L_join")
    a.label("L_pubg")
    for k in range(2): a(f"v_and_or_b32 {v(R[0]+k)}, {v(R[0]+k)}, {v(vM24)}, s{sT8}")
    a(f"v_lshlrev_b32 {v(vT[0])}, 3, v0")
    a.vmop(f"buffer_store_dwordx2 {v(R[0],2)}, {v(vT[0])}, {srd(SRD_WS)}, s{sS1PUB} offen sc1", role='pub1')
    a("s_branch L_join")
    a.label("L_light")
    code_prefetch(True)
    for i in range(k0): issue_k(i, shadow=True)
    make_consts()
    a(f"s_waitcnt lgkmcnt(0)\ns_add_u32 s{sT32}, s{sT32}, 1\ns_and_b32 s{sT8}, s{sT32}, 255")
    stamp(); stamp()
    a.label("L_join")
    for x in vX: V.release(x,3)
    V.release(vXo); V.release(vW1o); V.release(vXA)
    for f in F: V.release(f)
    for x in vW1: V.release(x,4)
    stamp()

    mksrd(SRD_V,8,268435456); mksrd(SRD_WO,12,4718592); mksrd(SRD_W2,20,5308416)

    stream=[]
    stream+=kops
    def window():
        if len(stream)>=D: a.waitvm(stream[len(stream)-D])
    for i in range(k0,32):
        window(); issue_k(i); stream.append(kops[-1])
    vQ=[V.alloc(2,2) for _ in range(2)]
    vQo=V.alloc()
    sQ0,sQ1=sT2,sT3
    a(f"v_lshlrev_b32 {v(vQo)}, 3, v0")
    def qaddr():
        a(f"s_lshl_b32 s{sQ0}, s{sB}, 15\ns_lshl_b32 s{sT1}, s{sKVH}, 11\ns_add_u32 s{sQ0}, s{sQ0}, s{sT1}\ns_lshl_b32 s{sT1}, s{sW}, 9\ns_add_u32 s{sQ0}, s{sQ0}, s{sT1}\ns_add_u32 s{sQ0}, s{sQ0}, {WS_Q}\ns_add_u32 s{sQ1}, s{sQ0}, 65536")
    qaddr()
    def qtext(k): return f"buffer_load_dwordx2 {v(vQ[k],2)}, {v(vQo)}, {srd(SRD_WS)}, s{[sQ0,sQ1][k]} offen sc1"
    window(); qops=[a.vmop(qtext(0)), a.vmop(qtext(1))]; stream+=qops
    vops=[]
    def issue_v(i):
        a(f"s_xor_b32 s{sT0}, s{sKV}, {i<<12}")
        vops.append(a.vmop(f"buffer_load_dwordx4 {ar(128+4*i)}, {v(vVoff)}, {srd(SRD_V)}, s{sT0} offen{NT}")); stream.append(vops[-1])
    def pump_v(win=True):
        if len(vops)<32:
            if win: window()
            issue_v(len(vops))
    for i in range(D-1): pump_v()
    a.waitvm(qops[1])
    stamp()
    a.label("L_qchk")
    a(f"v_cmp_ne_u32 vcc, s{sT32}, {v(vQ[0]+1)}\nv_cmp_ne_u32 s[70:71], s{sT32}, {v(vQ[1]+1)}\ns_or_b64 s[70:71], s[70:71], vcc\ns_cbranch_scc0 L_qok")
    a(f"s_cmp_eq_u32 s{sCNT}, 0\ns_cbranch_scc1 L_qok\ns_sub_u32 s{sCNT}, s{sCNT}, 1")
    qaddr()
    a.shadow(qtext(0)); a.shadow(qtext(1))
    a("s_waitcnt vmcnt(0)\ns_branch L_qchk")
    a.label("L_qok")
    a(f"v_add_f32 {v(vQ[0])}, {v(vQ[0])}, {v(vQ[1])}\nv_cvt_pk_bf16_f32 {v(vQ[0])}, {v(vQ[0])}, {v(vQ[0])}")
    a(f"s_lshl_b32 s{sT1}, s{sW}, 7\nv_lshl_add_u32 {v(vT[0])}, v0, 1, s{sT1}\nds_write_b16 {v(vT[0])}, {v(vQ[0])} offset:{L_Q}")
    vBq=V.alloc(4,2)
    a(f"v_lshrrev_b32 {v(vT[1])}, 3, {v(vN)}\nv_and_b32 {v(vT[2])}, 3, {v(vN)}\nv_lshl_add_u32 {v(vT[2])}, {v(vG)}, 2, {v(vT[2])}\nv_lshlrev_b32 {v(vT[2])}, 4, {v(vT[2])}\nv_lshl_add_u32 {v(vT[1])}, {v(vT[1])}, 8, {v(vT[2])}")
    a(f"s_waitcnt lgkmcnt(0)\ns_barrier\nds_read_b128 {v(vBq,4)}, {v(vT[1])} offset:{L_Q}\ns_waitcnt lgkmcnt(0)")
    for x in vQ: V.release(x,2)
    V.release(vQo)
    Z=[V.alloc() for _ in range(32)]
    C=[V.alloc(4,2) for _ in range(3)]
    vM=V.alloc(); vL=V.alloc()
    def qk(i): a(f"v_mfma_f32_16x16x32_bf16 {v(C[i%3],4)}, {ar(4*i)}, {v(vBq,4)}, 0")
    qk(0); qk(1)
    npump=[0]
    for i in range(32):
        if i+2<32: qk(i+2)
        c=C[i%3]; z=Z[i]
        a(f"v_mov_b32_dpp {v(z)}, {v(c)} quad_perm:[0,0,0,0] row_mask:0xf bank_mask:0xf")
        for r in range(1,4):
            a(f"v_add_f32_dpp {v(z)}, {v(c+r)}, {v(z)} quad_perm:[{r},{r},{r},{r}] row_mask:0xf bank_mask:0xf")
        a(f"v_cvt_pk_bf16_f32 {v(z)}, 0, {v(z)}\nv_mul_f32 {v(z)}, s{sSCALE}, {v(z)}\nv_cvt_pk_bf16_f32 {v(z)}, 0, {v(z)}")
        if i==1: a(f"v_max_f32 {v(vM)}, {v(Z[0])}, {v(Z[1])}")
        elif i%2==1: a(f"v_max3_f32 {v(vM)}, {v(vM)}, {v(Z[i-1])}, {v(Z[i])}")
        if i%12==11 and npump[0]<NP: pump_v(); npump[0]+=1
    for c in C: V.release(c,4)
    V.release(vBq,4)
    def xrow(x, op, tmp):
        a(f"v_mov_b32 {v(tmp)}, {v(x)}\nv_permlane16_swap_b32 {v(x)}, {v(tmp)}\nv_{op}_f32 {v(x)}, {v(x)}, {v(tmp)}")
        a(f"v_mov_b32 {v(tmp)}, {v(x)}\nv_permlane32_swap_b32 {v(x)}, {v(tmp)}\nv_{op}_f32 {v(x)}, {v(x)}, {v(tmp)}")
    xrow(vM,"max",vT[0])
    if dump=='z':
        for i in range(32):
            a(f"v_lshlrev_b32 {v(vT[0])}, 2, v0\ns_lshl_b32 s{sT1}, s2, 2\ns_add_u32 s{sT1}, s{sT1}, s{sW}\ns_lshl_b32 s{sT1}, s{sT1}, 13\ns_add_u32 s{sT1}, s{sT1}, {WS_DUMP+256*i}")
            a.vmop(f"buffer_store_dword {v(Z[i])}, {v(vT[0])}, {srd(SRD_WS)}, s{sT1} offen", role='dbg')
    stamp()
    vMC=V.alloc()
    a(f"v_mul_f32 {v(vMC)}, s{sLOG2E}, {v(vM)}")
    PK=[V.alloc() for _ in range(16)]
    for i in range(32):
        z=Z[i]
        a(f"v_fma_f32 {v(z)}, {v(z)}, s{sLOG2E}, -{v(vMC)}\nv_exp_f32 {v(z)}, {v(z)}")
        if i%2==1:
            za,zb=Z[i-1],Z[i]
            a(f"v_add_f32 {v(vT[0])}, {v(za)}, {v(zb)}")
            if i==1: a(f"v_mov_b32 {v(vL)}, {v(vT[0])}")
            else: a(f"v_add_f32 {v(vL)}, {v(vL)}, {v(vT[0])}")
            a(f"v_cvt_pk_bf16_f32 {v(PK[i//2])}, {v(za)}, {v(zb)}")
        if i%16==15 and npump[0]<NP: pump_v(); npump[0]+=1
    for z in Z: V.release(z)
    V.release(vMC)
    xrow(vL,"add",vT[0])
    vML=V.alloc(2,2)
    a(f"v_mov_b32 {v(vML)}, {v(vM)}\nv_mov_b32 {v(vML+1)}, {v(vL)}")
    a(f"v_lshrrev_b32 {v(vT[0])}, 3, {v(vN)}\ns_lshl_b32 s{sT1}, s{sW}, 3\nv_lshl_add_u32 {v(vT[0])}, {v(vT[0])}, 5, s{sT1}")
    a(f"ds_write_b64 {v(vT[0])}, {v(vML,2)} offset:{L_ST}\ns_waitcnt lgkmcnt(0)\ns_barrier")
    V.release(vML,2); V.release(vM); V.release(vL)
    S0=V.alloc(4,2); S1=V.alloc(4,2); vF=V.alloc(); vMx=V.alloc()
    a(f"v_lshrrev_b32 {v(vT[0])}, 1, {v(vG)}\nv_lshlrev_b32 {v(vT[0])}, 5, {v(vT[0])}\ns_lshl_b32 s{sT1}, s{sW}, 3\nv_add_u32 {v(vT[1])}, s{sT1}, {v(vT[0])}")
    a(f"ds_read_b128 {v(S0,4)}, {v(vT[0])} offset:{L_ST}\nds_read_b128 {v(S1,4)}, {v(vT[0])} offset:{L_ST+16}\nds_read_b32 {v(vF)}, {v(vT[1])} offset:{L_ST}\ns_waitcnt lgkmcnt(0)")
    a(f"v_max3_f32 {v(vMx)}, {v(S0)}, {v(S0+2)}, {v(S1)}\nv_max_f32 {v(vMx)}, {v(vMx)}, {v(S1+2)}")
    a(f"v_sub_f32 {v(vF)}, {v(vF)}, {v(vMx)}\nv_mul_f32 {v(vF)}, s{sLOG2E}, {v(vF)}\nv_exp_f32 {v(vF)}, {v(vF)}")
    a(f"s_cmp_lg_u32 s{sW}, 0\ns_cbranch_scc1 L_nostat")
    for k,r in enumerate([S0,S0+2,S1,S1+2]):
        a(f"v_sub_f32 {v(r)}, {v(r)}, {v(vMx)}\nv_mul_f32 {v(r)}, s{sLOG2E}, {v(r)}\nv_exp_f32 {v(r)}, {v(r)}")
    a(f"v_mul_f32 {v(vT[0])}, {v(S0)}, {v(S0+1)}\nv_fmac_f32 {v(vT[0])}, {v(S0+2)}, {v(S0+3)}\nv_fmac_f32 {v(vT[0])}, {v(S1)}, {v(S1+1)}\nv_fmac_f32 {v(vT[0])}, {v(S1+2)}, {v(S1+3)}")
    a(f"v_readlane_b32 s{sT2}, {v(vMx)}, 32\nv_readlane_b32 s{sT3}, {v(vT[0])}, 32")
    a(f"v_mov_b32 {v(S0)}, {v(vMx)}\nv_mov_b32 {v(S0+1)}, {v(vT[0])}\nv_mov_b32 {v(S0+2)}, s{sT2}\nv_mov_b32 {v(S0+3)}, s{sT3}")
    for k in range(4): a(f"v_and_or_b32 {v(S0+k)}, {v(S0+k)}, {v(vM24)}, s{sT8}")
    a(f"s_lshl_b32 s{sT1}, s{sKVH}, 8\ns_lshl_b32 s{sT2}, s{sB}, 7\ns_add_u32 s{sT1}, s{sT1}, s{sT2}\ns_lshl_b32 s{sT2}, s{sSP}, 4\ns_add_u32 s{sT1}, s{sT1}, s{sT2}\ns_add_u32 s{sT1}, s{sT1}, {WS_ST}")
    a(f"v_cmp_eq_u32 vcc, 0, v0\nv_mov_b32 {v(vT[1])}, {OOB}\nv_cndmask_b32 {v(vT[1])}, {v(vT[1])}, 0, vcc")
    a.vmop(f"buffer_store_dwordx4 {v(S0,4)}, {v(vT[1])}, {srd(SRD_WS)}, s{sT1} offen sc1", role='w0')
    a.label("L_nostat")
    V.release(S0,4); V.release(S1,4); V.release(vMx)
    stamp()
    a(f"s_lshl_b32 s{sSTART}, s{sW}, 3\ns_mov_b32 s{sCOUNT}, 8")
    a(f"s_cmp_eq_u32 s{sCH}, 0\ns_cbranch_scc0 L_ch1")
    a(f"s_cmp_eq_u32 s{sW}, 3\ns_cselect_b32 s{sCOUNT}, 12, 8\ns_branch L_chd")
    a.label("L_ch1")
    a(f"s_add_u32 s{sT1}, s{sSTART}, 4\ns_cmp_eq_u32 s{sW}, 0\ns_cselect_b32 s{sSTART}, 0, s{sT1}\ns_cselect_b32 s{sCOUNT}, 12, 8")
    a.label("L_chd")
    a(f"s_mul_i32 s{sT1}, s{sCH}, 36\ns_add_u32 s{sSTART}, s{sSTART}, s{sT1}")
    vW2o=V.alloc(); vWOo=V.alloc(); vPub=V.alloc(); vCol=V.alloc()
    a(f"v_add_u32 {v(vCol)}, s{sSTART}, {v(vN)}")
    a(f"v_cmp_gt_u32 s[70:71], s{sCOUNT}, {v(vN)}")
    a(f"v_lshlrev_b32 {v(vT[0])}, 4, {v(vCol)}")
    a(f"s_mul_i32 s{sT1}, s{sRB2}, 36\nv_mul_u32_u24 {v(vT[1])}, 9, {v(vG)}\nv_add_u32 {v(vT[1])}, s{sT1}, {v(vT[1])}\nv_mul_u32_u24 {v(vT[1])}, 1152, {v(vT[1])}\nv_add_u32 {v(vW2o)}, {v(vT[0])}, {v(vT[1])}")
    a(f"s_lshl_b32 s{sT1}, s{sRB}, 5\nv_lshl_add_u32 {v(vT[1])}, {v(vG)}, 3, s{sT1}\nv_mul_u32_u24 {v(vT[1])}, 1152, {v(vT[1])}\nv_add_u32 {v(vWOo)}, {v(vT[0])}, {v(vT[1])}")
    a(f"v_and_b32 {v(vT[0])}, 1, {v(vG)}\nv_lshlrev_b32 {v(vT[0])}, 2, {v(vT[0])}\nv_lshl_add_u32 {v(vCol)}, {v(vCol)}, 3, {v(vT[0])}")
    a(f"v_lshrrev_b32 {v(vT[0])}, 1, {v(vG)}\nv_mul_u32_u24 {v(vT[0])}, 36, {v(vT[0])}\nv_lshrrev_b32 {v(vT[1])}, 4, {v(vCol)}\nv_add_u32 {v(vT[0])}, {v(vT[0])}, {v(vT[1])}\nv_lshlrev_b32 {v(vT[0])}, 13, {v(vT[0])}")
    a(f"v_and_b32 {v(vT[1])}, 15, {v(vCol)}\nv_lshl_add_u32 {v(vPub)}, {v(vT[1])}, 2, {v(vT[0])}")
    a(f"v_mov_b32 {v(vT[0])}, {OOB}")
    for x in (vW2o,vWOo,vPub): a(f"v_cndmask_b32 {v(x)}, {v(vT[0])}, {v(x)}, s[70:71]")
    V.release(vCol)
    vW2=[V.alloc(4,2) for _ in range(9)]; vWO=[V.alloc(4,2) for _ in range(8)]
    w2ops=[]; woops=[]
    def issue_tail():
        if len(w2ops)<9:
            t=len(w2ops); so = '0' if t<4 else (f"s{s4608}" if t<8 else f"s{s9216}"); off=1152*(t%4)
            w2ops.append(a.vmop(f"buffer_load_dwordx4 {v(vW2[t],4)}, {v(vW2o)}, {srd(SRD_W2)}, {so} offen offset:{off}{NT}"))
        elif len(woops)<8:
            t=len(woops); so='0' if t<4 else f"s{s4608}"; off=1152*(t%4)
            woops.append(a.vmop(f"buffer_load_dwordx4 {v(vWO[t],4)}, {v(vWOo)}, {srd(SRD_WO)}, {so} offen offset:{off}{NT}"))
    vH=[V.alloc(2,2) for _ in range(4)]; vHo=V.alloc()
    def haddr():
        a(f"v_lshrrev_b32 {v(vT[0])}, 5, v0\nv_and_b32 {v(vT[1])}, 31, v0\nv_mul_u32_u24 {v(vHo)}, 18432, {v(vT[0])}\nv_lshl_add_u32 {v(vHo)}, {v(vT[1])}, 3, {v(vHo)}")
        a(f"v_cmp_gt_u32 vcc, 18, {v(vT[1])}\nv_mov_b32 {v(vT[0])}, {OOB}\nv_cndmask_b32 {v(vHo)}, {v(vT[0])}, {v(vHo)}, vcc")
    def htext(k): return f"buffer_load_dwordx2 {v(vH[k],2)}, {v(vHo)}, {srd(SRD_WS)}, s{sT1} offen sc1"
    def hissue(shadow):
        ops=[]
        for k in range(4):
            a(f"s_mul_i32 s{sT1}, s{sRB2}, 144\ns_add_u32 s{sT1}, s{sT1}, {WS_G+k*36864}")
            if shadow: a.shadow(htext(k))
            else: ops.append(a.vmop(htext(k), role='w1'))
        return ops
    vAcc2=vAcc
    hops=None
    HI=1;
    for i in range(32):
        abuild(vA[i%2], PK[i//2], i%2)
        a.waitvm(vops[i])
        a(f"v_mfma_f32_16x16x32_bf16 {v(vAcc2,4)}, {v(vA[i%2],4)}, {ar(128+4*i)}, {'0' if i==0 else v(vAcc2,4)}")
        if len(vops)<32: pump_v(win=False)
        else: issue_tail(); issue_tail()
        if i==HI:
            a(f"s_cmp_lg_u32 s{sW}, 1\ns_cbranch_scc1 L_noh1")
            haddr(); hops=hissue(False)
            a.label("L_noh1")
        if i==HI+D+NP:
            a(f"s_cmp_lg_u32 s{sW}, 1\ns_cbranch_scc1 L_noh2")
            a.waitvm(hops[3], ('w1',))
            a.label("L_hchk")
            T0,T1=vT[0],vT[1]
            a(f"v_bitop3_b32 {v(T0)}, {v(vH[0])}, {v(vH[0]+1)}, {v(vH[1])} bitop3:0x80\nv_bitop3_b32 {v(T0)}, {v(T0)}, {v(vH[1]+1)}, {v(vH[2])} bitop3:0x80\nv_bitop3_b32 {v(T0)}, {v(T0)}, {v(vH[2]+1)}, {v(vH[3])} bitop3:0x80\nv_and_b32 {v(T0)}, {v(T0)}, {v(vH[3]+1)}")
            a(f"v_or3_b32 {v(T1)}, {v(vH[0])}, {v(vH[0]+1)}, {v(vH[1])}\nv_or3_b32 {v(T1)}, {v(T1)}, {v(vH[1]+1)}, {v(vH[2])}\nv_or3_b32 {v(T1)}, {v(T1)}, {v(vH[2]+1)}, {v(vH[3])}\nv_or_b32 {v(T1)}, {v(T1)}, {v(vH[3]+1)}")
            a(f"v_and_b32 {v(T0)}, 255, {v(T0)}\nv_and_b32 {v(T1)}, 255, {v(T1)}")
            a(f"v_and_b32 {v(vT[2])}, 31, v0\nv_cmp_gt_u32 s[68:69], 18, {v(vT[2])}")
            a(f"v_cmp_ne_u32 vcc, s{sT8}, {v(T0)}\nv_cmp_ne_u32 s[70:71], s{sT8}, {v(T1)}\ns_or_b64 s[70:71], s[70:71], vcc\ns_and_b64 s[70:71], s[70:71], s[68:69]\ns_cbranch_scc0 L_hok")
            a(f"s_cmp_eq_u32 s{sCNT}, 0\ns_cbranch_scc1 L_hok\ns_sub_u32 s{sCNT}, s{sCNT}, 1")
            hissue(True)
            a("s_waitcnt vmcnt(0)\ns_branch L_hchk")
            a.label("L_hok")
            for k in range(4):
                for e in range(2): a(f"v_and_b32 {v(vH[k]+e)}, {v(vH[k]+e)}, {v(vM24)}")
            for e in range(2):
                g_,u_=vH[0]+e,vH[2]+e
                a(f"v_add_f32 {v(g_)}, {v(g_)}, {v(vH[1]+e)}\nv_add_f32 {v(u_)}, {v(u_)}, {v(vH[3]+e)}")
                a(f"v_cvt_pk_bf16_f32 {v(g_)}, 0, {v(g_)}\nv_cvt_pk_bf16_f32 {v(u_)}, 0, {v(u_)}")
                a(f"v_mul_f32 {v(T0)}, s{sLOG2E}, {v(g_)}\nv_exp_f32 {v(T0)}, -{v(T0)}\nv_add_f32 {v(T0)}, 1.0, {v(T0)}\nv_rcp_f32 {v(T0)}, {v(T0)}\nv_mul_f32 {v(g_)}, {v(g_)}, {v(T0)}")
                a(f"v_cvt_pk_bf16_f32 {v(g_)}, 0, {v(g_)}\nv_mul_f32 {v(g_)}, {v(g_)}, {v(u_)}\nv_cvt_pk_bf16_f32 {v(g_)}, {v(g_)}, {v(g_)}")
                a(f"v_and_b32 {v(T0)}, 31, v0\nv_lshl_add_u32 {v(T0)}, {v(T0)}, 1, {e}\nv_mul_u32_u24 {v(T1)}, 57, {v(T0)}\nv_lshrrev_b32 {v(T1)}, 9, {v(T1)}")
                a(f"v_mul_u32_u24 {v(vT[2])}, 9, {v(T1)}\nv_sub_u32 {v(T0)}, {v(T0)}, {v(vT[2])}\nv_lshlrev_b32 {v(T0)}, 1, {v(T0)}\nv_lshl_add_u32 {v(T0)}, {v(T1)}, 5, {v(T0)}")
                a(f"v_lshrrev_b32 {v(T1)}, 5, v0\nv_lshl_add_u32 {v(T0)}, {v(T1)}, 7, {v(T0)}")
                a(f"s_mov_b64 s[70:71], exec\ns_mov_b64 exec, s[68:69]\nds_write_b16 {v(T0)}, {v(g_)} offset:{L_H}\ns_mov_b64 exec, s[70:71]")
            a.label("L_noh2")
    while len(w2ops)<9 or len(woops)<8: issue_tail()
    for x in PK: V.release(x)
    stamp()
    for r in range(4): a(f"v_mul_f32 {v(vAcc2+r)}, {v(vAcc2+r)}, {v(vF)}")
    a(f"s_lshl_b32 s{sT1}, s{sW}, 10\nv_add_u32 {v(vT[0])}, s{sT1}, {v(vRed)}")
    a(f"ds_write_b128 {v(vT[0])}, {v(vAcc2,4)} offset:{L_OR}\ns_waitcnt lgkmcnt(0)\ns_barrier")
    V.release(vF)
    vOG=[V.alloc() for _ in range(8)]; vSt=V.alloc(4,2); vWt=[V.alloc(4,2) for _ in range(2)]
    RR=[V.alloc(4,2) for _ in range(4)]
    a(f"s_cmp_lg_u32 s{sW}, 0\ns_cbranch_scc1 L_noo1")
    for ww in range(4): a(f"ds_read_b128 {v(RR[ww],4)}, {v(vVoff)} offset:{L_OR+1024*ww}")
    a(f"v_lshrrev_b32 {v(vT[0])}, 3, v0\nv_and_b32 {v(vT[1])}, 7, v0\nv_lshlrev_b32 {v(vT[1])}, 4, {v(vT[1])}\nv_lshl_add_u32 {v(vT[0])}, {v(vT[0])}, 11, {v(vT[1])}")
    a(f"s_lshl_b32 s{sT1}, s{sKVH}, 14\ns_lshl_b32 s{sT2}, s{sSP}, 8\ns_add_u32 s{sT1}, s{sT1}, s{sT2}\ns_lshl_b32 s{sT2}, s{sB}, 7\ns_add_u32 s{sT1}, s{sT1}, s{sT2}\ns_add_u32 s{sT1}, s{sT1}, {WS_O}")
    a("s_waitcnt lgkmcnt(0)")
    for r in range(4):
        a(f"v_add_f32 {v(RR[0]+r)}, {v(RR[0]+r)}, {v(RR[1]+r)}\nv_add_f32 {v(RR[2]+r)}, {v(RR[2]+r)}, {v(RR[3]+r)}")
    for r in range(4):
        a(f"v_add_f32 {v(RR[0]+r)}, {v(RR[0]+r)}, {v(RR[2]+r)}\nv_and_or_b32 {v(RR[0]+r)}, {v(RR[0]+r)}, {v(vM24)}, s{sT8}")
    a.vmop(f"buffer_store_dwordx4 {v(RR[0],4)}, {v(vT[0])}, {srd(SRD_WS)}, s{sT1} offen sc1", role='w0')
    a(f"v_cmp_gt_u32 vcc, 16, v0\nv_mov_b32 {v(vT[1])}, {OOB}\nv_cndmask_b32 {v(vT[2])}, {v(vT[1])}, {v(vVoff)}, vcc")
    def stissue(shadow):
        a(f"s_lshl_b32 s{sT1}, s{sKVH}, 8\ns_add_u32 s{sT1}, s{sT1}, {WS_ST}")
        t=f"buffer_load_dwordx4 {v(vSt,4)}, {v(vT[2])}, {srd(SRD_WS)}, s{sT1} offen sc1"
        if shadow: a.shadow(t); return None
        return a.vmop(t, role='w0')
    stop=stissue(False)
    a(f"v_lshlrev_b32 {v(vT[3])}, 2, v0")
    def ogissue(shadow):
        a(f"s_lshl_b32 s{sT1}, s{sRB}, 11\ns_add_u32 s{sT1}, s{sT1}, {WS_O}")
        ops=[]
        for k in range(8):
            t=f"buffer_load_dword {v(vOG[k])}, {v(vT[3])}, {srd(SRD_WS)}, s{sT1} offen offset:{256*k} sc1"
            if shadow: a.shadow(t)
            else: ops.append(a.vmop(t, role='w0'))
        return ops
    ogops=ogissue(False)
    a.label("L_noo1")
    stamp()
    vHA=V.alloc(4,2); vHB=V.alloc()
    a(f"v_lshrrev_b32 {v(vHB)}, 3, {v(vN)}\nv_lshlrev_b32 {v(vHB)}, 7, {v(vHB)}\nv_lshl_add_u32 {v(vHB)}, {v(vG)}, 5, {v(vHB)}")
    a(f"ds_read_b128 {v(vHA,4)}, {v(vHB)} offset:{L_H}\nds_read_b32 {v(vHB)}, {v(vHB)} offset:{L_H+16}\ns_waitcnt lgkmcnt(0)")
    vAccG=V.alloc(4,2)
    for t in range(9):
        src = vHA+t//2 if t<8 else vHB
        abuild(vA[t%2], src, t%2)
        a.waitvm(w2ops[t])
        a(f"v_mfma_f32_16x16x32_bf16 {v(vAccG,4)}, {v(vA[t%2],4)}, {v(vW2[t],4)}, {'0' if t==0 else v(vAccG,4)}")
    for r in range(4): a(f"v_and_or_b32 {v(vAccG+r)}, {v(vAccG+r)}, {v(vM24)}, s{sT8}")
    a(f"s_lshl_b32 s{sT1}, s{sRB2}, 6\ns_add_u32 s{sT1}, s{sT1}, {WS_GP}")
    a.vmop(f"buffer_store_dwordx4 {v(vAccG,4)}, {v(vPub)}, {srd(SRD_WS)}, s{sT1} offen sc1")
    V.release(vHA,4); V.release(vHB)
    for x in vW2: V.release(x,4)
    stamp()
    a(f"s_cmp_lg_u32 s{sW}, 0\ns_cbranch_scc1 L_noo2")
    a.waitvm(stop, ('w0',))
    a.label("L_stchk")
    T0,T1=vT[0],vT[1]
    a(f"v_bitop3_b32 {v(T0)}, {v(vSt)}, {v(vSt+1)}, {v(vSt+2)} bitop3:0x80\nv_and_b32 {v(T0)}, {v(T0)}, {v(vSt+3)}\nv_or3_b32 {v(T1)}, {v(vSt)}, {v(vSt+1)}, {v(vSt+2)}\nv_or_b32 {v(T1)}, {v(T1)}, {v(vSt+3)}")
    a(f"v_and_b32 {v(T0)}, 255, {v(T0)}\nv_and_b32 {v(T1)}, 255, {v(T1)}\nv_cmp_gt_u32 s[68:69], 16, v0")
    a(f"v_cmp_ne_u32 vcc, s{sT8}, {v(T0)}\nv_cmp_ne_u32 s[70:71], s{sT8}, {v(T1)}\ns_or_b64 s[70:71], s[70:71], vcc\ns_and_b64 s[70:71], s[70:71], s[68:69]\ns_cbranch_scc0 L_stok")
    a(f"s_cmp_eq_u32 s{sCNT}, 0\ns_cbranch_scc1 L_stok\ns_sub_u32 s{sCNT}, s{sCNT}, 1")
    stissue(True)
    a("s_waitcnt vmcnt(0)\ns_branch L_stchk")
    a.label("L_stok")
    a(f"s_cmp_eq_u32 s{sB}, 0\ns_cbranch_scc1 L_h0\nv_mov_b32 {v(vSt)}, {v(vSt+2)}\nv_mov_b32 {v(vSt+1)}, {v(vSt+3)}")
    a.label("L_h0")
    a(f"v_and_b32 {v(vSt)}, {v(vSt)}, {v(vM24)}\nv_and_b32 {v(vSt+1)}, {v(vSt+1)}, {v(vM24)}\nv_mov_b32 {v(vSt+2)}, {v(vSt)}")
    def red8(x,op):
        for m in ["quad_perm:[1,0,3,2]","quad_perm:[2,3,0,1]","row_half_mirror"]:
            a(f"v_{op}_f32_dpp {v(x)}, {v(x)}, {v(x)} {m} row_mask:0xf bank_mask:0xf")
    red8(vSt+2,"max")
    a(f"v_sub_f32 {v(vSt)}, {v(vSt)}, {v(vSt+2)}\nv_mul_f32 {v(vSt)}, s{sLOG2E}, {v(vSt)}\nv_exp_f32 {v(vSt)}, {v(vSt)}\nv_mul_f32 {v(vSt+1)}, {v(vSt+1)}, {v(vSt)}")
    red8(vSt+1,"add")
    a(f"v_rcp_f32 {v(vSt+3)}, {v(vSt+1)}\nv_mul_f32 {v(vSt+2)}, {v(vSt)}, {v(vSt+3)}\nv_fma_f32 {v(vSt)}, -{v(vSt+2)}, {v(vSt+1)}, {v(vSt)}\nv_fma_f32 {v(vSt)}, {v(vSt)}, {v(vSt+3)}, {v(vSt+2)}")
    a(f"v_lshlrev_b32 {v(T0)}, 2, v0\ns_mov_b64 s[70:71], exec\ns_mov_b64 exec, s[68:69]\nds_write_b32 {v(T0)}, {v(vSt)} offset:{L_WG}\ns_mov_b64 exec, s[70:71]\ns_waitcnt lgkmcnt(0)")
    a(f"v_lshrrev_b32 {v(T0)}, 5, v0\nv_lshlrev_b32 {v(T0)}, 5, {v(T0)}\nds_read_b128 {v(vWt[0],4)}, {v(T0)} offset:{L_WG}\nds_read_b128 {v(vWt[1],4)}, {v(T0)} offset:{L_WG+16}")
    a.waitvm(ogops[7], ('w0',))
    a.label("L_ochk")
    a(f"v_bitop3_b32 {v(T0)}, {v(vOG[0])}, {v(vOG[1])}, {v(vOG[2])} bitop3:0x80\nv_bitop3_b32 {v(T0)}, {v(T0)}, {v(vOG[3])}, {v(vOG[4])} bitop3:0x80\nv_bitop3_b32 {v(T0)}, {v(T0)}, {v(vOG[5])}, {v(vOG[6])} bitop3:0x80\nv_and_b32 {v(T0)}, {v(T0)}, {v(vOG[7])}")
    a(f"v_or3_b32 {v(T1)}, {v(vOG[0])}, {v(vOG[1])}, {v(vOG[2])}\nv_or3_b32 {v(T1)}, {v(T1)}, {v(vOG[3])}, {v(vOG[4])}\nv_or3_b32 {v(T1)}, {v(T1)}, {v(vOG[5])}, {v(vOG[6])}\nv_or_b32 {v(T1)}, {v(T1)}, {v(vOG[7])}")
    a(f"v_and_b32 {v(T0)}, 255, {v(T0)}\nv_and_b32 {v(T1)}, 255, {v(T1)}")
    a(f"v_cmp_ne_u32 vcc, s{sT8}, {v(T0)}\nv_cmp_ne_u32 s[70:71], s{sT8}, {v(T1)}\ns_or_b64 s[70:71], s[70:71], vcc\ns_cbranch_scc0 L_ook")
    a(f"s_cmp_eq_u32 s{sCNT}, 0\ns_cbranch_scc1 L_ook\ns_sub_u32 s{sCNT}, s{sCNT}, 1")
    ogissue(True)
    a("s_waitcnt vmcnt(0)\ns_branch L_ochk")
    a.label("L_ook")
    a("s_waitcnt lgkmcnt(0)")
    for k in range(8):
        w=vWt[k//4]+k%4
        a(f"v_and_b32 {v(vOG[k])}, {v(vOG[k])}, {v(vM24)}")
        if k<2: a(f"v_mul_f32 {v([T0,T1][k])}, {v(vOG[k])}, {v(w)}")
        else: a(f"v_fmac_f32 {v([T0,T1][k%2])}, {v(vOG[k])}, {v(w)}")
    a(f"v_add_f32 {v(T0)}, {v(T0)}, {v(T1)}\nv_cvt_pk_bf16_f32 {v(T0)}, {v(T0)}, {v(T0)}\nv_lshlrev_b32 {v(T1)}, 1, v0\nds_write_b16 {v(T1)}, {v(T0)} offset:{L_O}\ns_waitcnt lgkmcnt(0)")
    a.label("L_noo2")
    a("s_barrier")
    stamp()
    vOA=RR[1]
    a(f"v_lshrrev_b32 {v(vT[0])}, 3, {v(vN)}\nv_lshlrev_b32 {v(vT[0])}, 6, {v(vT[0])}\nv_lshl_add_u32 {v(vT[0])}, {v(vG)}, 4, {v(vT[0])}\nds_read_b128 {v(vOA,4)}, {v(vT[0])} offset:{L_O}")
    a.waitvm(woops[7])
    a("s_waitcnt lgkmcnt(0)")
    vAccS=RR[2]
    for t in range(8):
        abuild(vA[t%2], vOA+t//2, t%2)
        a(f"v_mfma_f32_16x16x32_bf16 {v(vAccS,4)}, {v(vA[t%2],4)}, {v(vWO[t],4)}, {'0' if t==0 else v(vAccS,4)}")
    a(f"s_lshl_b32 s{sT1}, s{sRB}, 6\ns_add_u32 s{sT1}, s{sT1}, {WS_S}")
    for r in range(4): a(f"v_and_or_b32 {v(vAccS+r)}, {v(vAccS+r)}, {v(vM24)}, s{sT8}")
    a.vmop(f"buffer_store_dwordx4 {v(vAccS,4)}, {v(vPub)}, {srd(SRD_WS)}, s{sT1} offen sc1")
    stamp()
    a(f"s_cmp_lt_u32 s2, {FIN0}\ns_cbranch_scc1 L_done")
    a(f"s_sub_u32 s{sUNIT}, s2, {FIN0}")
    mksrd(SRD_X,4,2304); mksrd(SRD_OUT,22,2304)
    GG=[vWO[0],vWO[1]]; SS=[vWO[2],vWO[3]]; vXr=vT[5]
    vOut=V.alloc()
    a(f"s_lshl_b32 s{sT1}, s{sUNIT}, 5\nv_lshl_add_u32 {v(vOut)}, v0, 1, s{sT1}\nv_cmp_gt_u32 vcc, 16, v0\nv_mov_b32 {v(vT[0])}, {OOB}\nv_cndmask_b32 {v(vOut)}, {v(vT[0])}, {v(vOut)}, vcc")
    xop=a.vmop(f"buffer_load_ushort {v(vXr)}, {v(vOut)}, {srd(SRD_X)}, 0 offen", role='fin')
    def fissue(regs, base, shadow):
        a(f"s_lshl_b32 s{sT1}, s{sUNIT}, 13\ns_lshl_b32 s{sT2}, s{sW}, 11\ns_add_u32 s{sT1}, s{sT1}, s{sT2}\ns_add_u32 s{sT1}, s{sT1}, {base}")
        ops=[]
        for k in range(2):
            t=f"buffer_load_dwordx4 {v(regs[k],4)}, {v(vVoff)}, {srd(SRD_WS)}, s{sT1} offen offset:{1024*k} sc1"
            if shadow: a.shadow(t)
            else: ops.append(a.vmop(t, role='fin'))
        return ops
    gops=fissue(GG,WS_GP,False); sops=fissue(SS,WS_S,False)
    def fcheck_reduce(name, regs, base, op, ldsoff):
        a.waitvm(op, ('fin',))
        a.label(f"L_{name}chk")
        A_,B_=regs
        T0,T1=vT[0],vT[1]
        a(f"v_bitop3_b32 {v(T0)}, {v(A_)}, {v(A_+1)}, {v(A_+2)} bitop3:0x80\nv_bitop3_b32 {v(T0)}, {v(T0)}, {v(A_+3)}, {v(B_)} bitop3:0x80\nv_bitop3_b32 {v(T0)}, {v(T0)}, {v(B_+1)}, {v(B_+2)} bitop3:0x80\nv_and_b32 {v(T0)}, {v(T0)}, {v(B_+3)}")
        a(f"v_or3_b32 {v(T1)}, {v(A_)}, {v(A_+1)}, {v(A_+2)}\nv_or3_b32 {v(T1)}, {v(T1)}, {v(A_+3)}, {v(B_)}\nv_or3_b32 {v(T1)}, {v(T1)}, {v(B_+1)}, {v(B_+2)}\nv_or_b32 {v(T1)}, {v(T1)}, {v(B_+3)}")
        a(f"v_and_b32 {v(T0)}, 255, {v(T0)}\nv_and_b32 {v(T1)}, 255, {v(T1)}")
        a(f"v_cmp_ne_u32 vcc, s{sT8}, {v(T0)}\nv_cmp_ne_u32 s[70:71], s{sT8}, {v(T1)}\ns_or_b64 s[70:71], s[70:71], vcc\ns_cbranch_scc0 L_{name}ok")
        a(f"s_cmp_eq_u32 s{sCNT}, 0\ns_cbranch_scc1 L_{name}ok\ns_sub_u32 s{sCNT}, s{sCNT}, 1")
        fissue(regs,base,True)
        a(f"s_waitcnt vmcnt(0)\ns_branch L_{name}chk")
        a.label(f"L_{name}ok")
        for r in range(4):
            a(f"v_and_b32 {v(A_+r)}, {v(A_+r)}, {v(vM24)}\nv_and_b32 {v(B_+r)}, {v(B_+r)}, {v(vM24)}")
        for r in range(4): a(f"v_add_f32 {v(A_+r)}, {v(A_+r)}, {v(B_+r)}")
        for m in ["row_ror:4","row_ror:8"]:
            for r in range(4): a(f"v_add_f32_dpp {v(A_+r)}, {v(A_+r)}, {v(A_+r)} {m} row_mask:0xf bank_mask:0xf")
        a(f"v_permlane16_swap_b32 {v(A_)}, {v(A_+1)}\nv_permlane16_swap_b32 {v(A_+2)}, {v(A_+3)}")
        a(f"v_add_f32 {v(A_)}, {v(A_)}, {v(A_+1)}\nv_add_f32 {v(A_+2)}, {v(A_+2)}, {v(A_+3)}")
        a(f"v_permlane32_swap_b32 {v(A_)}, {v(A_+2)}\nv_add_f32 {v(A_)}, {v(A_)}, {v(A_+2)}")
        a(f"ds_write_b32 {v(vT[2])}, {v(A_)} offset:{L_F+ldsoff}")
    a(f"v_and_b32 {v(vT[2])}, 3, v0\nv_lshl_add_u32 {v(vT[2])}, {v(vT[2])}, 2, {v(vG)}\ns_lshl_b32 s{sT1}, s{sW}, 2\nv_lshl_add_u32 {v(vT[2])}, {v(vT[2])}, 4, s{sT1}")
    fcheck_reduce("g",GG,WS_GP,gops[1],0)
    fcheck_reduce("s",SS,WS_S,sops[1],256)
    a("s_waitcnt lgkmcnt(0)\ns_barrier")
    a(f"s_cmp_lg_u32 s{sW}, 0\ns_cbranch_scc1 L_done")
    Fg=vWO[4]; Fs=vWO[5]
    a(f"v_and_b32 {v(vT[0])}, 15, v0\nv_lshlrev_b32 {v(vT[0])}, 4, {v(vT[0])}\nds_read_b128 {v(Fg,4)}, {v(vT[0])} offset:{L_F}\nds_read_b128 {v(Fs,4)}, {v(vT[0])} offset:{L_F+256}\ns_waitcnt lgkmcnt(0)")
    for F_ in (Fg,Fs):
        a(f"v_add_f32 {v(F_)}, {v(F_)}, {v(F_+1)}\nv_add_f32 {v(F_+2)}, {v(F_+2)}, {v(F_+3)}\nv_add_f32 {v(F_)}, {v(F_)}, {v(F_+2)}\nv_cvt_pk_bf16_f32 {v(F_)}, 0, {v(F_)}")
    a(f"v_mul_f32 {v(vT[0])}, s{sLOG2E}, {v(Fg)}\nv_exp_f32 {v(vT[0])}, -{v(vT[0])}\nv_add_f32 {v(vT[0])}, 1.0, {v(vT[0])}\nv_rcp_f32 {v(vT[0])}, {v(vT[0])}\nv_mul_f32 {v(Fg)}, {v(Fg)}, {v(vT[0])}\nv_cvt_pk_bf16_f32 {v(Fg)}, 0, {v(Fg)}")
    a(f"v_mul_f32 {v(Fs)}, {v(Fs)}, {v(Fg)}\nv_cvt_pk_bf16_f32 {v(Fs)}, 0, {v(Fs)}\nv_lshlrev_b32 {v(vXr)}, 16, {v(vXr)}\nv_add_f32 {v(Fs)}, {v(Fs)}, {v(vXr)}\nv_cvt_pk_bf16_f32 {v(Fs)}, {v(Fs)}, {v(Fs)}")
    a.vmop(f"buffer_store_short {v(Fs)}, {v(vOut)}, {srd(SRD_OUT)}, 0 offen", role='fin')
    a(f"s_cmp_lg_u32 s{sUNIT}, 0\ns_cbranch_scc1 L_done")
    a(f"v_cmp_eq_u32 vcc, 0, v0\nv_mov_b32 {v(vT[1])}, {OOB}\nv_cndmask_b32 {v(vT[1])}, {v(vT[1])}, 0, vcc\nv_mov_b32 {v(vT[0])}, s{sT32}")
    a.vmop(f"buffer_store_dword {v(vT[0])}, {v(vT[1])}, {srd(SRD_WS)}, 0 offen sc1", role='fin')
    a.label("L_done")
    if stamps:
        stamp()
        n=nst[0]
        a(f"s_lshl_b32 s{sT1}, s2, 2\ns_add_u32 s{sT1}, s{sT1}, s{sW}\ns_lshl_b32 s{sT1}, s{sT1}, 6\ns_add_u32 s{sT1}, s{sT1}, {WS_STAMP}")
        a(f"v_cmp_eq_u32 vcc, 0, v0\nv_mov_b32 {v(vT[1])}, {OOB}\nv_cndmask_b32 {v(vT[1])}, {v(vT[1])}, 0, vcc")
        for k in range(n):
            a(f"v_mov_b32 {v(vT[0])}, s{STAMP0+k}")
            a.vmop(f"buffer_store_dword {v(vT[0])}, {v(vT[1])}, {srd(SRD_WS)}, s{sT1} offen offset:{4*k}", role='dbg')
    a("s_waitcnt vmcnt(0)")
    a.label("L_end")
    a("s_endpgm")
    a.label("L_codelast")
    a("s_nop 0\ns_nop 0\ns_nop 0\ns_nop 0")
    body,nn=a.finish()
    hdr=open('recurrent_scan__sliding_block_cached__glu_gated_swiglu__decode.s.ref').read().split('\n')
    head=[l for l in hdr if l.startswith(';') and '@launch' not in l and 'Override launch' not in l and 'grid=ceil' not in l]
    head=head[:13]
    out=head+[f"; @launch grid=(256,1,1) block=(256,1,1) lds={LDS_BYTES}",
        '.amdgcn_target "amdgcn-amd-amdhsa--gfx950"','.text',f'.globl {KNAME}','.p2align 12',f'.type {KNAME},@function',f'{KNAME}:']
    out+=["    "+l if not l.endswith(':') else l for l in body]
    out+=['.section .rodata,"a"','.p2align 6',f'.amdhsa_kernel {KNAME}','  .amdhsa_next_free_vgpr 512','  .amdhsa_next_free_sgpr 102','  .amdhsa_accum_offset 256',
          '  .amdhsa_group_segment_fixed_size 0','  .amdhsa_kernarg_size 96','  .amdhsa_user_sgpr_count 2','  .amdhsa_user_sgpr_kernarg_segment_ptr 1',
          '  .amdhsa_system_sgpr_workgroup_id_x 1','  .amdhsa_float_denorm_mode_32 3','.end_amdhsa_kernel']
    info=dict(ninstr=len(body), nops=nn, vhw=V.hw, nstamps=nst[0], k0=k0)
    return "\n".join(out)+"\n", info

if __name__=="__main__":
    kw=json.loads(sys.argv[2]) if len(sys.argv)>2 else {}
    s,info=gen(**kw)
    open(sys.argv[1],"w").write(s)
    print(info)
```

```python
import sys, json
sys.path.insert(0, 'gen')
from asmlib import Asm

KNAME = "recurrent_scan__sliding_block_cached__glu_gated_swiglu__decode_kernel"

WS_E  = 0
WS_Q  = 4096
WS_G  = WS_Q + 131072
WS_ST = WS_G + 147456
WS_O  = WS_ST + 4096
WS_S  = WS_O + 262144
WS_GP = WS_S + 589824
WS_END = WS_GP + 589824
WS_STAMP = 2 << 20
WS_DUMP  = 3 << 20
WS_NREC = 8 << 20
L_XN=0; L_S1=2560; L_Q=6656; L_ST=7168; L_WG=7296; L_H=7424; L_OR=7680; L_O=11776; L_F=11904; LDS_BYTES=12544
OOB = 0x7ff00000
NHEAVY = 208
FIN0 = 184

C_SCALE = 0x3DB504F3
C_LOG2E = 0x3FB8AA3B
C_EPS   = 0x3727C5AC
C_576   = 0x44100000
C_R576  = 0x3AE38E39

class VAlloc:
    def __init__(s, lo, hi): s.free=set(range(lo,hi)); s.hw=lo
    def alloc(s, n=1, align=1):
        if n>1 and align<2: align=2
        for b in range(0,256):
            if b%align==0 and all((b+i) in s.free for i in range(n)):
                for i in range(n): s.free.discard(b+i)
                s.hw=max(s.hw,b+n); return b
        raise RuntimeError("out of VGPRs")
    def release(s, b, n=1):
        for i in range(n):
            assert (b+i) not in s.free
            s.free.add(b+i)

def gen(D=8, P=12, NP=4, stamps=False, dump=None, timeout=100000, nt=True, codepf=True):
    a=Asm(); V=VAlloc(1,256)
    NT=" nt" if nt else ""
    v=lambda b,n=1: f"v{b}" if n==1 else f"v[{b}:{b+n-1}]"
    ar=lambda b,n=4: f"a[{b}:{b+n-1}]"
    sW=3
    SRD_K,SRD_V,SRD_W1,SRD_WO,SRD_W2,SRD_WS,SRD_X,SRD_OUT=28,32,36,40,44,48,52,56
    srd=lambda b: f"s[{b}:{b+3}]"
    sT32,sT8=62,63
    sKV=64
    sT0,sT1,sT2,sT3,sT4,sT5=66,67,68,69,70,71
    sCNT=72
    sLOG2E,sSCALE=73,74
    sB,sKVH,sSP,sCH=75,76,77,78
    sRB2,sRB=79,80
    sS1STR,sS1OFF,sS1PUB,sS1ISQ=81,82,83,84
    s4608,s9216=85,86
    sSTART,sCOUNT=87,88
    sUNIT=89
    sS1STR7=65
    STAMP0=90
    nst=[0]
    STREG=list(range(90,102))+[14,15,24,25]
    def stamp(k=None):
        if not stamps: return
        if k is None:
            k=nst[0]; nst[0]+=1
        a(f"s_memrealtime s[70:71]\ns_waitcnt lgkmcnt(0)\ns_mov_b32 s{STREG[k]}, s70")
    ctx_heavy=('heavy',)

    a(f"s_cmp_ge_u32 s2, 256\ns_cbranch_scc1 L_end")
    a("s_load_dwordx16 s[4:19], s[0:1], 0\ns_load_dwordx8 s[20:27], s[0:1], 64")
    vLane=0
    vG=V.alloc(); vN=V.alloc(); vKoff=V.alloc(); vVoff=V.alloc(); vM24=V.alloc(); vRed=V.alloc()
    vSEL=[[V.alloc() for r in range(4)] for h in range(2)]
    vT=[V.alloc() for _ in range(6)]
    a(f"v_lshrrev_b32 {v(vT[0])}, 6, v0\nv_and_b32 v0, 63, v0\nv_readfirstlane_b32 s{sW}, {v(vT[0])}")
    a(f"v_lshrrev_b32 {v(vG)}, 4, v0\nv_and_b32 {v(vN)}, 15, v0\nv_lshlrev_b32 {v(vVoff)}, 4, v0")
    a(f"v_bfe_u32 {v(vT[1])}, v0, 2, 2\nv_and_b32 {v(vT[2])}, 3, v0\nv_lshlrev_b32 {v(vKoff)}, 8, {v(vT[1])}")
    a(f"v_lshl_add_u32 {v(vKoff)}, {v(vG)}, 6, {v(vKoff)}\nv_lshl_add_u32 {v(vKoff)}, {v(vT[2])}, 4, {v(vKoff)}")
    a(f"s_lshr_b32 s{sT0}, s2, 3\ns_and_b32 s{sSP}, s2, 7\ns_lshr_b32 s{sB}, s{sT0}, 4\ns_and_b32 s{sKVH}, s{sT0}, 15\ns_and_b32 s{sCH}, s2, 1\ns_lshr_b32 s{sRB2}, s2, 1")
    a(f"s_lshl_b32 s{sRB}, s{sKVH}, 1\ns_add_u32 s{sRB}, s{sRB}, s{sB}\ns_lshl_b32 s{sRB}, s{sRB}, 2\ns_lshr_b32 s{sT1}, s{sSP}, 1\ns_add_u32 s{sRB}, s{sRB}, s{sT1}")
    a(f"s_mul_i32 s{sT1}, s2, 1237\ns_lshr_b32 s{sT1}, s{sT1}, 2\ns_and_b32 s{sT1}, s{sT1}, 127")
    a(f"s_xor_b32 s{sT1}, s{sT1}, s{sW}")
    a(f"s_lshl_b32 s{sT1}, s{sT1}, 10\ns_lshl_b32 s{sKV}, s{sT0}, 23\ns_lshl_b32 s{sT2}, s{sSP}, 17\ns_add_u32 s{sKV}, s{sKV}, s{sT2}\ns_add_u32 s{sKV}, s{sKV}, 7340032\ns_or_b32 s{sKV}, s{sKV}, s{sT1}")
    a(f"s_mov_b32 s{sCNT}, {timeout}\ns_mov_b32 s{sLOG2E}, {C_LOG2E}\ns_mov_b32 s{sSCALE}, {C_SCALE}\ns_mov_b32 s{s4608}, 4608\ns_mov_b32 s{s9216}, 9216")
    a("s_waitcnt lgkmcnt(0)")
    def mksrd(d,lo,size):
        a(f"s_mov_b32 s{d}, s{lo}\ns_and_b32 s{d+1}, s{lo+1}, 0xffff\ns_mov_b32 s{d+2}, {size}\ns_mov_b32 s{d+3}, 0x20000")
    mksrd(SRD_K,6,268435456)
    mksrd(SRD_WS,26,WS_NREC)
    a(f"s_load_dword s{sT32}, s[26:27], 0")
    stamp()
    kops=[];
    def kload_text(i): return f"buffer_load_dwordx4 {ar(4*i)}, {v(vKoff)}, {srd(SRD_K)}, s{sT0} offen{NT}"
    def issue_k(i, shadow=False):
        a(f"s_xor_b32 s{sT0}, s{sKV}, {i<<12}")
        if shadow: a.shadow(kload_text(i))
        else: kops.append(a.vmop(kload_text(i)))
    def code_prefetch(shadow):
        if not codepf: return
        vD=vDummy
        a(f"s_getpc_b64 s[60:61]")
        lab=f"L_pc{'s' if shadow else 'h'}"
        a.label(lab)
        a(f"s_sub_u32 s60, s60, {lab}-{KNAME}\ns_subb_u32 s61, s61, 0")
        a(f"s_lshr_b32 s{sT1}, s2, 3\ns_lshl_b32 s{sT1}, s{sT1}, 2\ns_add_u32 s{sT1}, s{sT1}, s{sW}\ns_and_b32 s{sT1}, s{sT1}, 15\ns_lshl_b32 s{sT1}, s{sT1}, 10")
        a(f"v_add_u32 {v(vT[0])}, s{sT1}, {v(vVoff)}\nv_min_u32 {v(vT[0])}, L_codelast-{KNAME}, {v(vT[0])}")
        t=f"global_load_dwordx4 {v(vD,4)}, {v(vT[0])}, s[60:61]"
        if shadow: a.shadow(t)
        else: a.vmop(t, role='heavy')
    vDummy=V.alloc(4,2)
    a(f"s_cmp_ge_u32 s2, {NHEAVY}\ns_cbranch_scc1 L_light")

    mksrd(SRD_X,4,2304)
    a(f"s_lshr_b32 s{sT0}, s2, 1\ns_and_b32 s{sT1}, s2, 1")
    a(f"s_cmp_lt_u32 s{sT0}, 32\ns_cbranch_scc1 L_selq\ns_cmp_lt_u32 s{sT0}, 68\ns_cbranch_scc1 L_sel1")
    a(f"s_sub_u32 s{sT0}, s{sT0}, 68\ns_mov_b32 s{SRD_W1}, s18\ns_and_b32 s{SRD_W1+1}, s19, 0xffff\ns_mov_b32 s{SRD_W1+2}, 5308416\ns_mov_b32 s{sS1STR}, 9216\ns_mov_b32 s{sS1ISQ}, 0")
    a(f"s_lshl_b32 s{sS1PUB}, s{sT1}, 1\ns_add_u32 s{sS1PUB}, s{sS1PUB}, 4")
    a("s_branch L_selg")
    a.label("L_sel1")
    a(f"s_sub_u32 s{sT0}, s{sT0}, 32\ns_mov_b32 s{SRD_W1}, s16\ns_and_b32 s{SRD_W1+1}, s17, 0xffff\ns_mov_b32 s{SRD_W1+2}, 5308416\ns_mov_b32 s{sS1STR}, 9216\ns_mov_b32 s{sS1ISQ}, 0")
    a(f"s_lshl_b32 s{sS1PUB}, s{sT1}, 1")
    a.label("L_selg")
    a(f"s_add_u32 s{sS1PUB}, s{sS1PUB}, s{sW}\ns_mul_i32 s{sS1PUB}, s{sS1PUB}, 18432\ns_lshl_b32 s{sT2}, s{sT0}, 9\ns_add_u32 s{sS1PUB}, s{sS1PUB}, s{sT2}\ns_add_u32 s{sS1PUB}, s{sS1PUB}, {WS_G}")
    a("s_branch L_seld")
    a.label("L_selq")
    a(f"s_mov_b32 s{SRD_W1}, s10\ns_and_b32 s{SRD_W1+1}, s11, 0xffff\ns_mov_b32 s{SRD_W1+2}, 4718592\ns_mov_b32 s{sS1STR}, 8192\ns_mov_b32 s{sS1ISQ}, 1")
    a(f"s_lshl_b32 s{sS1PUB}, s{sT1}, 1\ns_add_u32 s{sS1PUB}, s{sS1PUB}, s{sW}\ns_lshl_b32 s{sS1PUB}, s{sS1PUB}, 15\ns_lshl_b32 s{sT2}, s{sT0}, 10\ns_add_u32 s{sS1PUB}, s{sS1PUB}, s{sT2}\ns_add_u32 s{sS1PUB}, s{sS1PUB}, {WS_Q}")
    a.label("L_seld")
    a(f"s_mov_b32 s{SRD_W1+3}, 0x20000")
    vX=[V.alloc(3,2) for _ in range(3)]
    vXo=V.alloc()
    a(f"v_lshrrev_b32 {v(vT[0])}, 5, v0\nv_and_b32 {v(vT[1])}, 31, v0\nv_mul_u32_u24 {v(vXo)}, 1152, {v(vT[0])}\nv_mad_u32_u24 {v(vXo)}, {v(vT[1])}, 12, {v(vXo)}")
    xops=[a.vmop(f"buffer_load_dwordx3 {v(vX[c],3)}, {v(vXo)}, {srd(SRD_X)}, 0 offen offset:{384*c}", role='heavy') for c in range(3)]
    vW1o=V.alloc()
    a(f"s_mul_i32 s{sT2}, s{sT1}, 288\ns_mul_i32 s{sT3}, s{sW}, 72\ns_add_u32 s{sT2}, s{sT2}, s{sT3}")
    a(f"v_lshl_add_u32 {v(vW1o)}, {v(vG)}, 1, s{sT2}\nv_mul_lo_u32 {v(vW1o)}, {v(vW1o)}, s{sS1STR}\ns_lshl_b32 s{sT3}, s{sT0}, 8")
    a(f"v_lshl_add_u32 {v(vW1o)}, {v(vN)}, 4, {v(vW1o)}\nv_add_u32 {v(vW1o)}, s{sT3}, {v(vW1o)}")
    vXA=V.alloc()
    a(f"v_lshrrev_b32 {v(vT[2])}, 3, {v(vN)}\nv_lshl_add_u32 {v(vXA)}, {v(vG)}, 1, s{sT2}\nv_lshlrev_b32 {v(vXA)}, 1, {v(vXA)}\nv_mul_u32_u24 {v(vT[2])}, 1152, {v(vT[2])}\nv_add_u32 {v(vXA)}, {v(vT[2])}, {v(vXA)}")
    vW1=[V.alloc(4,2) for _ in range(18)]
    a(f"s_mov_b32 s{sS1OFF}, 0\ns_mul_i32 s{sS1STR7}, s{sS1STR}, 7")
    w1ops=[]
    def issue_w1(t):
        w1ops.append(a.vmop(f"buffer_load_dwordx4 {v(vW1[t],4)}, {v(vW1o)}, {srd(SRD_W1)}, s{sS1OFF} offen{NT}", role='heavy'))
        if t<17: a(f"s_add_u32 s{sS1OFF}, s{sS1OFF}, s{sS1STR if t%2==0 else sS1STR7}")
    for t in range(4): issue_w1(t)
    code_prefetch(False)
    for t in range(4,P): issue_w1(t)
    nW=[P]; nK=[0]
    def pump_s1():
        if nW[0]<18: issue_w1(nW[0]); nW[0]+=1
        else: issue_k(nK[0]); nK[0]+=1
    def make_consts():
        a(f"v_mov_b32 {v(vM24)}, 0xffffff00")
        a(f"v_lshrrev_b32 {v(vT[0])}, 1, {v(vG)}\nv_and_b32 {v(vT[1])}, 1, {v(vG)}\nv_lshl_add_u32 {v(vT[1])}, {v(vN)}, 1, {v(vT[1])}\nv_lshlrev_b32 {v(vT[1])}, 4, {v(vT[1])}\nv_lshl_add_u32 {v(vRed)}, {v(vT[0])}, 9, {v(vT[1])}")
        a(f"v_and_b32 {v(vT[0])}, 1, v0\nv_bfe_u32 {v(vT[1])}, v0, 1, 2")
        a(f"v_cmp_eq_u32 vcc, 1, {v(vT[0])}")
        for hs,pat in enumerate([0x0100,0x0302]):
            a(f"v_mov_b32 {v(vT[2])}, {0x0c0c0000|pat}\nv_mov_b32 {v(vT[3])}, {(pat<<16)|0x0c0c}\nv_cndmask_b32 {v(vT[4+hs])}, {v(vT[2])}, {v(vT[3])}, vcc")
        a(f"v_mov_b32 {v(vT[2])}, 0x0c0c0c0c")
        for r in range(4):
            a(f"v_cmp_eq_u32 vcc, {r}, {v(vT[1])}")
            for hs in range(2):
                a(f"v_cndmask_b32 {v(vSEL[hs][r])}, {v(vT[2])}, {v(vT[4+hs])}, vcc")
    make_consts()
    a.waitvm(xops[2], ctx_heavy)
    stamp()
    F=[V.alloc() for _ in range(18)]
    xd=[vX[c]+k for c in range(3) for k in range(3)]
    for j,d in enumerate(xd):
        a(f"v_lshlrev_b32 {v(F[2*j])}, 16, {v(d)}\nv_and_b32 {v(F[2*j+1])}, 0xffff0000, {v(d)}")
    vS=vT[0]; vU=vT[1]; vMean=vT[2]; vMb=vT[3]
    def red32(x, op="add"):
        for m in ["quad_perm:[1,0,3,2]","quad_perm:[2,3,0,1]","row_half_mirror","row_mirror"]:
            a(f"v_{op}_f32_dpp {v(x)}, {v(x)}, {v(x)} {m} row_mask:0xf bank_mask:0xf")
        a(f"v_mov_b32 {v(vU)}, {v(x)}\nv_permlane16_swap_b32 {v(x)}, {v(vU)}\nv_{op}_f32 {v(x)}, {v(x)}, {v(vU)}")
    def div576(dst, x):
        a(f"v_mul_f32 {v(dst)}, {C_R576}, {v(x)}\nv_mov_b32 {v(vU)}, {C_576}\nv_fma_f32 {v(vU)}, -{v(dst)}, {v(vU)}, {v(x)}\nv_mul_f32 {v(vU)}, {C_R576}, {v(vU)}\nv_add_f32 {v(dst)}, {v(dst)}, {v(vU)}")
    a(f"v_add_f32 {v(vS)}, {v(F[0])}, {v(F[1])}\nv_add_f32 {v(vT[4])}, {v(F[2])}, {v(F[3])}")
    for j in range(4,18,2):
        a(f"v_add_f32 {v(vS)}, {v(vS)}, {v(F[j])}\nv_add_f32 {v(vT[4])}, {v(vT[4])}, {v(F[j+1])}")
    a(f"v_add_f32 {v(vS)}, {v(vS)}, {v(vT[4])}")
    red32(vS); div576(vMean, vS)
    a(f"v_cvt_pk_bf16_f32 {v(vMb)}, 0, {v(vMean)}")
    a(f"v_mov_b32 {v(vS)}, 0\nv_mov_b32 {v(vT[4])}, 0")
    for j in range(18):
        acc = vS if j%2==0 else vT[4]
        a(f"v_sub_f32 {v(vT[5])}, {v(F[j])}, {v(vMean)}\nv_fmac_f32 {v(acc)}, {v(vT[5])}, {v(vT[5])}")
    a(f"v_add_f32 {v(vS)}, {v(vS)}, {v(vT[4])}")
    red32(vS); div576(vMean, vS)
    a(f"v_cvt_pk_bf16_f32 {v(vMean)}, 0, {v(vMean)}\nv_add_f32 {v(vMean)}, {C_EPS}, {v(vMean)}\nv_cvt_pk_bf16_f32 {v(vMean)}, 0, {v(vMean)}")
    a(f"v_sqrt_f32 {v(vMean)}, {v(vMean)}\nv_cvt_pk_bf16_f32 {v(vMean)}, 0, {v(vMean)}\nv_rcp_f32 {v(vS)}, {v(vMean)}")
    for j in range(18):
        f=F[j]
        a(f"v_sub_f32 {v(f)}, {v(f)}, {v(vMb)}\nv_cvt_pk_bf16_f32 {v(f)}, 0, {v(f)}\nv_mul_f32 {v(vT[4])}, {v(f)}, {v(vS)}\nv_fma_f32 {v(f)}, -{v(vT[4])}, {v(vMean)}, {v(f)}\nv_fma_f32 {v(f)}, {v(f)}, {v(vS)}, {v(vT[4])}")
        if j%2==1:
            a(f"v_cvt_pk_bf16_f32 {v(F[j-1])}, {v(F[j-1])}, {v(f)}")
            jj=j//2; c,k=divmod(jj,3)
            a(f"ds_write_b32 {v(vXo)}, {v(F[j-1])} offset:{L_XN+384*c+4*k}")
    a("s_waitcnt lgkmcnt(0)")
    XA=F[:9]
    for u in range(9): a(f"ds_read_b32 {v(XA[u])}, {v(vXA)} offset:{L_XN+16*u}")
    a("s_waitcnt lgkmcnt(0)")
    a(f"s_add_u32 s{sT32}, s{sT32}, 1\ns_and_b32 s{sT8}, s{sT32}, 255")
    stamp()
    vA=[V.alloc(4,2) for _ in range(2)]
    vAcc=V.alloc(4,2)
    def abuild(dst, src, hs):
        for r in range(4): a(f"v_perm_b32 {v(dst+r)}, {v(src)}, {v(src)}, {v(vSEL[hs][r])}")
    for t in range(18):
        abuild(vA[t%2], XA[t//2], t%2)
        a.waitvm(w1ops[t], ctx_heavy)
        a(f"v_mfma_f32_16x16x32_bf16 {v(vAcc,4)}, {v(vA[t%2],4)}, {v(vW1[t],4)}, {'0' if t==0 else v(vAcc,4)}")
        pump_s1()
    k0=nK[0]
    a(f"s_lshl_b32 s{sT1}, s{sW}, 10\nv_add_u32 {v(vT[0])}, s{sT1}, {v(vRed)}")
    a(f"ds_write_b128 {v(vT[0])}, {v(vAcc,4)} offset:{L_S1}\ns_waitcnt lgkmcnt(0)\ns_barrier")
    a(f"s_cmp_ge_u32 s{sW}, 2\ns_cbranch_scc1 L_join")
    R=[vW1[i] for i in range(4)]
    a(f"s_lshl_b32 s{sT1}, s{sW}, 9\nv_lshl_add_u32 {v(vT[0])}, v0, 3, s{sT1}")
    for ww in range(4): a(f"ds_read_b64 {v(R[ww],2)}, {v(vT[0])} offset:{L_S1+1024*ww}")
    a("s_waitcnt lgkmcnt(0)")
    for k in range(2):
        a(f"v_add_f32 {v(R[0]+k)}, {v(R[0]+k)}, {v(R[1]+k)}\nv_add_f32 {v(R[2]+k)}, {v(R[2]+k)}, {v(R[3]+k)}\nv_add_f32 {v(R[0]+k)}, {v(R[0]+k)}, {v(R[2]+k)}")
    a(f"s_cmp_eq_u32 s{sS1ISQ}, 0\ns_cbranch_scc1 L_pubg")
    a(f"v_mov_b32 {v(R[1])}, {v(R[0])}\nv_mov_b32 {v(R[1]+1)}, s{sT32}\nv_mov_b32 {v(R[1]+2)}, {v(R[0]+1)}\nv_mov_b32 {v(R[1]+3)}, s{sT32}")
    a.vmop(f"buffer_store_dwordx4 {v(R[1],4)}, {v(vVoff)}, {srd(SRD_WS)}, s{sS1PUB} offen sc1", role='pub1')
    a("s_branch L_join")
    a.label("L_pubg")
    for k in range(2): a(f"v_and_or_b32 {v(R[0]+k)}, {v(R[0]+k)}, {v(vM24)}, s{sT8}")
    a(f"v_lshlrev_b32 {v(vT[0])}, 3, v0")
    a.vmop(f"buffer_store_dwordx2 {v(R[0],2)}, {v(vT[0])}, {srd(SRD_WS)}, s{sS1PUB} offen sc1", role='pub1')
    a("s_branch L_join")
    a.label("L_light")
    code_prefetch(True)
    for i in range(k0): issue_k(i, shadow=True)
    make_consts()
    a(f"s_waitcnt lgkmcnt(0)\ns_add_u32 s{sT32}, s{sT32}, 1\ns_and_b32 s{sT8}, s{sT32}, 255")
    stamp(1); stamp(2)
    a.label("L_join")
    for x in vX: V.release(x,3)
    V.release(vXo); V.release(vW1o); V.release(vXA)
    for f in F: V.release(f)
    for x in vW1: V.release(x,4)
    stamp()

    mksrd(SRD_V,8,268435456); mksrd(SRD_WO,12,4718592); mksrd(SRD_W2,20,5308416)

    stream=[]
    stream+=kops
    def window():
        if len(stream)>=D: a.waitvm(stream[len(stream)-D])
    for i in range(k0,32):
        window(); issue_k(i); stream.append(kops[-1])
    vQ=[V.alloc(2,2) for _ in range(2)]
    vQo=V.alloc()
    sQ0,sQ1=sT2,sT3
    a(f"v_lshlrev_b32 {v(vQo)}, 3, v0")
    def qaddr():
        a(f"s_lshl_b32 s{sQ0}, s{sB}, 15\ns_lshl_b32 s{sT1}, s{sKVH}, 11\ns_add_u32 s{sQ0}, s{sQ0}, s{sT1}\ns_lshl_b32 s{sT1}, s{sW}, 9\ns_add_u32 s{sQ0}, s{sQ0}, s{sT1}\ns_add_u32 s{sQ0}, s{sQ0}, {WS_Q}\ns_add_u32 s{sQ1}, s{sQ0}, 65536")
    qaddr()
    def qtext(k): return f"buffer_load_dwordx2 {v(vQ[k],2)}, {v(vQo)}, {srd(SRD_WS)}, s{[sQ0,sQ1][k]} offen sc1"
    window(); qops=[a.vmop(qtext(0)), a.vmop(qtext(1))]; stream+=qops
    vops=[]
    def issue_v(i):
        a(f"s_xor_b32 s{sT0}, s{sKV}, {i<<12}")
        vops.append(a.vmop(f"buffer_load_dwordx4 {ar(128+4*i)}, {v(vVoff)}, {srd(SRD_V)}, s{sT0} offen{NT}")); stream.append(vops[-1])
    def pump_v(win=True):
        if len(vops)<32:
            if win: window()
            issue_v(len(vops))
    for i in range(D-1): pump_v()
    a.waitvm(qops[1])
    stamp()
    a.label("L_qchk")
    a(f"v_cmp_ne_u32 vcc, s{sT32}, {v(vQ[0]+1)}\nv_cmp_ne_u32 s[70:71], s{sT32}, {v(vQ[1]+1)}\ns_or_b64 s[70:71], s[70:71], vcc\ns_cbranch_scc0 L_qok")
    a(f"s_cmp_eq_u32 s{sCNT}, 0\ns_cbranch_scc1 L_qok\ns_sub_u32 s{sCNT}, s{sCNT}, 1")
    qaddr()
    a.shadow(qtext(0)); a.shadow(qtext(1))
    a("s_waitcnt vmcnt(0)\ns_branch L_qchk")
    a.label("L_qok")
    a(f"v_add_f32 {v(vQ[0])}, {v(vQ[0])}, {v(vQ[1])}\nv_cvt_pk_bf16_f32 {v(vQ[0])}, {v(vQ[0])}, {v(vQ[0])}")
    a(f"s_lshl_b32 s{sT1}, s{sW}, 7\nv_lshl_add_u32 {v(vT[0])}, v0, 1, s{sT1}\nds_write_b16 {v(vT[0])}, {v(vQ[0])} offset:{L_Q}")
    vBq=V.alloc(4,2)
    a(f"v_lshrrev_b32 {v(vT[1])}, 3, {v(vN)}\nv_and_b32 {v(vT[2])}, 3, {v(vN)}\nv_lshl_add_u32 {v(vT[2])}, {v(vG)}, 2, {v(vT[2])}\nv_lshlrev_b32 {v(vT[2])}, 4, {v(vT[2])}\nv_lshl_add_u32 {v(vT[1])}, {v(vT[1])}, 8, {v(vT[2])}")
    a(f"s_waitcnt lgkmcnt(0)\ns_barrier\nds_read_b128 {v(vBq,4)}, {v(vT[1])} offset:{L_Q}\ns_waitcnt lgkmcnt(0)")
    for x in vQ: V.release(x,2)
    V.release(vQo)
    Z=[V.alloc() for _ in range(32)]
    C=[V.alloc(4,2) for _ in range(3)]
    vM=V.alloc(); vL=V.alloc()
    def qk(i): a(f"v_mfma_f32_16x16x32_bf16 {v(C[i%3],4)}, {ar(4*i)}, {v(vBq,4)}, 0")
    qk(0); qk(1)
    npump=[0]
    for i in range(32):
        if i+2<32: qk(i+2)
        c=C[i%3]; z=Z[i]
        a(f"v_mov_b32_dpp {v(z)}, {v(c)} quad_perm:[0,0,0,0] row_mask:0xf bank_mask:0xf")
        for r in range(1,4):
            a(f"v_add_f32_dpp {v(z)}, {v(c+r)}, {v(z)} quad_perm:[{r},{r},{r},{r}] row_mask:0xf bank_mask:0xf")
        a(f"v_cvt_pk_bf16_f32 {v(z)}, 0, {v(z)}\nv_mul_f32 {v(z)}, s{sSCALE}, {v(z)}\nv_cvt_pk_bf16_f32 {v(z)}, 0, {v(z)}")
        if i==1: a(f"v_max_f32 {v(vM)}, {v(Z[0])}, {v(Z[1])}")
        elif i%2==1: a(f"v_max3_f32 {v(vM)}, {v(vM)}, {v(Z[i-1])}, {v(Z[i])}")
        if i%12==11 and npump[0]<NP: pump_v(); npump[0]+=1
    for c in C: V.release(c,4)
    V.release(vBq,4)
    def xrow(x, op, tmp):
        a(f"v_mov_b32 {v(tmp)}, {v(x)}\nv_permlane16_swap_b32 {v(x)}, {v(tmp)}\nv_{op}_f32 {v(x)}, {v(x)}, {v(tmp)}")
        a(f"v_mov_b32 {v(tmp)}, {v(x)}\nv_permlane32_swap_b32 {v(x)}, {v(tmp)}\nv_{op}_f32 {v(x)}, {v(x)}, {v(tmp)}")
    xrow(vM,"max",vT[0])
    if dump=='z':
        for i in range(32):
            a(f"v_lshlrev_b32 {v(vT[0])}, 2, v0\ns_lshl_b32 s{sT1}, s2, 2\ns_add_u32 s{sT1}, s{sT1}, s{sW}\ns_lshl_b32 s{sT1}, s{sT1}, 13\ns_add_u32 s{sT1}, s{sT1}, {WS_DUMP+256*i}")
            a.vmop(f"buffer_store_dword {v(Z[i])}, {v(vT[0])}, {srd(SRD_WS)}, s{sT1} offen", role='dbg')
    stamp()
    vMC=V.alloc()
    a(f"v_mul_f32 {v(vMC)}, s{sLOG2E}, {v(vM)}")
    PK=[V.alloc() for _ in range(16)]
    for i in range(32):
        z=Z[i]
        a(f"v_fma_f32 {v(z)}, {v(z)}, s{sLOG2E}, -{v(vMC)}\nv_exp_f32 {v(z)}, {v(z)}")
        if i%2==1:
            za,zb=Z[i-1],Z[i]
            a(f"v_add_f32 {v(vT[0])}, {v(za)}, {v(zb)}")
            if i==1: a(f"v_mov_b32 {v(vL)}, {v(vT[0])}")
            else: a(f"v_add_f32 {v(vL)}, {v(vL)}, {v(vT[0])}")
            a(f"v_cvt_pk_bf16_f32 {v(PK[i//2])}, {v(za)}, {v(zb)}")
        if i%16==15 and npump[0]<NP: pump_v(); npump[0]+=1
    for z in Z: V.release(z)
    V.release(vMC)
    xrow(vL,"add",vT[0])
    vML=V.alloc(2,2)
    a(f"v_mov_b32 {v(vML)}, {v(vM)}\nv_mov_b32 {v(vML+1)}, {v(vL)}")
    a(f"v_lshrrev_b32 {v(vT[0])}, 3, {v(vN)}\ns_lshl_b32 s{sT1}, s{sW}, 3\nv_lshl_add_u32 {v(vT[0])}, {v(vT[0])}, 5, s{sT1}")
    a(f"ds_write_b64 {v(vT[0])}, {v(vML,2)} offset:{L_ST}\ns_waitcnt lgkmcnt(0)\ns_barrier")
    V.release(vML,2); V.release(vM); V.release(vL)
    S0=V.alloc(4,2); S1=V.alloc(4,2); vF=V.alloc(); vMx=V.alloc()
    a(f"v_lshrrev_b32 {v(vT[0])}, 1, {v(vG)}\nv_lshlrev_b32 {v(vT[0])}, 5, {v(vT[0])}\ns_lshl_b32 s{sT1}, s{sW}, 3\nv_add_u32 {v(vT[1])}, s{sT1}, {v(vT[0])}")
    a(f"ds_read_b128 {v(S0,4)}, {v(vT[0])} offset:{L_ST}\nds_read_b128 {v(S1,4)}, {v(vT[0])} offset:{L_ST+16}\nds_read_b32 {v(vF)}, {v(vT[1])} offset:{L_ST}\ns_waitcnt lgkmcnt(0)")
    a(f"v_max3_f32 {v(vMx)}, {v(S0)}, {v(S0+2)}, {v(S1)}\nv_max_f32 {v(vMx)}, {v(vMx)}, {v(S1+2)}")
    a(f"v_sub_f32 {v(vF)}, {v(vF)}, {v(vMx)}\nv_mul_f32 {v(vF)}, s{sLOG2E}, {v(vF)}\nv_exp_f32 {v(vF)}, {v(vF)}")
    a(f"s_cmp_lg_u32 s{sW}, 0\ns_cbranch_scc1 L_nostat")
    for k,r in enumerate([S0,S0+2,S1,S1+2]):
        a(f"v_sub_f32 {v(r)}, {v(r)}, {v(vMx)}\nv_mul_f32 {v(r)}, s{sLOG2E}, {v(r)}\nv_exp_f32 {v(r)}, {v(r)}")
    a(f"v_mul_f32 {v(vT[0])}, {v(S0)}, {v(S0+1)}\nv_fmac_f32 {v(vT[0])}, {v(S0+2)}, {v(S0+3)}\nv_fmac_f32 {v(vT[0])}, {v(S1)}, {v(S1+1)}\nv_fmac_f32 {v(vT[0])}, {v(S1+2)}, {v(S1+3)}")
    a(f"v_readlane_b32 s{sT2}, {v(vMx)}, 32\nv_readlane_b32 s{sT3}, {v(vT[0])}, 32")
    a(f"v_mov_b32 {v(S0)}, {v(vMx)}\nv_mov_b32 {v(S0+1)}, {v(vT[0])}\nv_mov_b32 {v(S0+2)}, s{sT2}\nv_mov_b32 {v(S0+3)}, s{sT3}")
    for k in range(4): a(f"v_and_or_b32 {v(S0+k)}, {v(S0+k)}, {v(vM24)}, s{sT8}")
    a(f"s_lshl_b32 s{sT1}, s{sKVH}, 8\ns_lshl_b32 s{sT2}, s{sB}, 7\ns_add_u32 s{sT1}, s{sT1}, s{sT2}\ns_lshl_b32 s{sT2}, s{sSP}, 4\ns_add_u32 s{sT1}, s{sT1}, s{sT2}\ns_add_u32 s{sT1}, s{sT1}, {WS_ST}")
    a(f"v_cmp_eq_u32 vcc, 0, v0\nv_mov_b32 {v(vT[1])}, {OOB}\nv_cndmask_b32 {v(vT[1])}, {v(vT[1])}, 0, vcc")
    a.vmop(f"buffer_store_dwordx4 {v(S0,4)}, {v(vT[1])}, {srd(SRD_WS)}, s{sT1} offen sc1", role='w0')
    a.label("L_nostat")
    V.release(S0,4); V.release(S1,4); V.release(vMx)
    stamp()
    a(f"s_lshl_b32 s{sSTART}, s{sW}, 3\ns_mov_b32 s{sCOUNT}, 8")
    a(f"s_cmp_eq_u32 s{sCH}, 0\ns_cbranch_scc0 L_ch1")
    a(f"s_cmp_eq_u32 s{sW}, 3\ns_cselect_b32 s{sCOUNT}, 12, 8\ns_branch L_chd")
    a.label("L_ch1")
    a(f"s_add_u32 s{sT1}, s{sSTART}, 4\ns_cmp_eq_u32 s{sW}, 0\ns_cselect_b32 s{sSTART}, 0, s{sT1}\ns_cselect_b32 s{sCOUNT}, 12, 8")
    a.label("L_chd")
    a(f"s_mul_i32 s{sT1}, s{sCH}, 36\ns_add_u32 s{sSTART}, s{sSTART}, s{sT1}")
    vW2o=V.alloc(); vWOo=V.alloc(); vPub=V.alloc(); vCol=V.alloc()
    a(f"v_add_u32 {v(vCol)}, s{sSTART}, {v(vN)}")
    a(f"v_cmp_gt_u32 s[70:71], s{sCOUNT}, {v(vN)}")
    a(f"v_lshlrev_b32 {v(vT[0])}, 4, {v(vCol)}")
    a(f"s_mul_i32 s{sT1}, s{sRB2}, 36\nv_mul_u32_u24 {v(vT[1])}, 9, {v(vG)}\nv_add_u32 {v(vT[1])}, s{sT1}, {v(vT[1])}\nv_mul_u32_u24 {v(vT[1])}, 1152, {v(vT[1])}\nv_add_u32 {v(vW2o)}, {v(vT[0])}, {v(vT[1])}")
    a(f"s_lshl_b32 s{sT1}, s{sRB}, 5\nv_lshl_add_u32 {v(vT[1])}, {v(vG)}, 3, s{sT1}\nv_mul_u32_u24 {v(vT[1])}, 1152, {v(vT[1])}\nv_add_u32 {v(vWOo)}, {v(vT[0])}, {v(vT[1])}")
    a(f"v_and_b32 {v(vT[0])}, 1, {v(vG)}\nv_lshlrev_b32 {v(vT[0])}, 2, {v(vT[0])}\nv_lshl_add_u32 {v(vCol)}, {v(vCol)}, 3, {v(vT[0])}")
    a(f"v_lshrrev_b32 {v(vT[0])}, 1, {v(vG)}\nv_mul_u32_u24 {v(vT[0])}, 36, {v(vT[0])}\nv_lshrrev_b32 {v(vT[1])}, 4, {v(vCol)}\nv_add_u32 {v(vT[0])}, {v(vT[0])}, {v(vT[1])}\nv_lshlrev_b32 {v(vT[0])}, 13, {v(vT[0])}")
    a(f"v_and_b32 {v(vT[1])}, 15, {v(vCol)}\nv_lshl_add_u32 {v(vPub)}, {v(vT[1])}, 2, {v(vT[0])}")
    a(f"v_mov_b32 {v(vT[0])}, {OOB}")
    for x in (vW2o,vWOo,vPub): a(f"v_cndmask_b32 {v(x)}, {v(vT[0])}, {v(x)}, s[70:71]")
    V.release(vCol)
    vW2=[V.alloc(4,2) for _ in range(9)]; vWO=[V.alloc(4,2) for _ in range(8)]
    w2ops=[]; woops=[]
    def issue_tail():
        if len(w2ops)<9:
            t=len(w2ops); so = '0' if t<4 else (f"s{s4608}" if t<8 else f"s{s9216}"); off=1152*(t%4)
            w2ops.append(a.vmop(f"buffer_load_dwordx4 {v(vW2[t],4)}, {v(vW2o)}, {srd(SRD_W2)}, {so} offen offset:{off}{NT}"))
        elif len(woops)<8:
            t=len(woops); so='0' if t<4 else f"s{s4608}"; off=1152*(t%4)
            woops.append(a.vmop(f"buffer_load_dwordx4 {v(vWO[t],4)}, {v(vWOo)}, {srd(SRD_WO)}, {so} offen offset:{off}{NT}"))
    vH=[V.alloc(2,2) for _ in range(4)]; vHo=V.alloc()
    def haddr():
        a(f"v_lshrrev_b32 {v(vT[0])}, 5, v0\nv_and_b32 {v(vT[1])}, 31, v0\nv_mul_u32_u24 {v(vHo)}, 18432, {v(vT[0])}\nv_lshl_add_u32 {v(vHo)}, {v(vT[1])}, 3, {v(vHo)}")
        a(f"v_cmp_gt_u32 vcc, 18, {v(vT[1])}\nv_mov_b32 {v(vT[0])}, {OOB}\nv_cndmask_b32 {v(vHo)}, {v(vT[0])}, {v(vHo)}, vcc")
    def htext(k): return f"buffer_load_dwordx2 {v(vH[k],2)}, {v(vHo)}, {srd(SRD_WS)}, s{sT1} offen sc1"
    def hissue(shadow):
        ops=[]
        for k in range(4):
            a(f"s_mul_i32 s{sT1}, s{sRB2}, 144\ns_add_u32 s{sT1}, s{sT1}, {WS_G+k*36864}")
            if shadow: a.shadow(htext(k))
            else: ops.append(a.vmop(htext(k), role='w1'))
        return ops
    vAcc2=vAcc
    hops=None
    HI=1;
    for i in range(32):
        abuild(vA[i%2], PK[i//2], i%2)
        a.waitvm(vops[i])
        a(f"v_mfma_f32_16x16x32_bf16 {v(vAcc2,4)}, {v(vA[i%2],4)}, {ar(128+4*i)}, {'0' if i==0 else v(vAcc2,4)}")
        if len(vops)<32: pump_v(win=False)
        else: issue_tail(); issue_tail()
        if i==HI:
            a(f"s_cmp_lg_u32 s{sW}, 1\ns_cbranch_scc1 L_noh1")
            haddr(); hops=hissue(False)
            a.label("L_noh1")
        if i==HI+D+NP:
            a(f"s_cmp_lg_u32 s{sW}, 1\ns_cbranch_scc1 L_noh2")
            a.waitvm(hops[3], ('w1',))
            a.label("L_hchk")
            T0,T1=vT[0],vT[1]
            a(f"v_bitop3_b32 {v(T0)}, {v(vH[0])}, {v(vH[0]+1)}, {v(vH[1])} bitop3:0x80\nv_bitop3_b32 {v(T0)}, {v(T0)}, {v(vH[1]+1)}, {v(vH[2])} bitop3:0x80\nv_bitop3_b32 {v(T0)}, {v(T0)}, {v(vH[2]+1)}, {v(vH[3])} bitop3:0x80\nv_and_b32 {v(T0)}, {v(T0)}, {v(vH[3]+1)}")
            a(f"v_or3_b32 {v(T1)}, {v(vH[0])}, {v(vH[0]+1)}, {v(vH[1])}\nv_or3_b32 {v(T1)}, {v(T1)}, {v(vH[1]+1)}, {v(vH[2])}\nv_or3_b32 {v(T1)}, {v(T1)}, {v(vH[2]+1)}, {v(vH[3])}\nv_or_b32 {v(T1)}, {v(T1)}, {v(vH[3]+1)}")
            a(f"v_and_b32 {v(T0)}, 255, {v(T0)}\nv_and_b32 {v(T1)}, 255, {v(T1)}")
            a(f"v_and_b32 {v(vT[2])}, 31, v0\nv_cmp_gt_u32 s[68:69], 18, {v(vT[2])}")
            a(f"v_cmp_ne_u32 vcc, s{sT8}, {v(T0)}\nv_cmp_ne_u32 s[70:71], s{sT8}, {v(T1)}\ns_or_b64 s[70:71], s[70:71], vcc\ns_and_b64 s[70:71], s[70:71], s[68:69]\ns_cbranch_scc0 L_hok")
            a(f"s_cmp_eq_u32 s{sCNT}, 0\ns_cbranch_scc1 L_hok\ns_sub_u32 s{sCNT}, s{sCNT}, 1")
            hissue(True)
            a("s_waitcnt vmcnt(0)\ns_branch L_hchk")
            a.label("L_hok")
            for k in range(4):
                for e in range(2): a(f"v_and_b32 {v(vH[k]+e)}, {v(vH[k]+e)}, {v(vM24)}")
            for e in range(2):
                g_,u_=vH[0]+e,vH[2]+e
                a(f"v_add_f32 {v(g_)}, {v(g_)}, {v(vH[1]+e)}\nv_add_f32 {v(u_)}, {v(u_)}, {v(vH[3]+e)}")
                a(f"v_cvt_pk_bf16_f32 {v(g_)}, 0, {v(g_)}\nv_cvt_pk_bf16_f32 {v(u_)}, 0, {v(u_)}")
                a(f"v_mul_f32 {v(T0)}, s{sLOG2E}, {v(g_)}\nv_exp_f32 {v(T0)}, -{v(T0)}\nv_add_f32 {v(T0)}, 1.0, {v(T0)}\nv_rcp_f32 {v(T0)}, {v(T0)}\nv_mul_f32 {v(g_)}, {v(g_)}, {v(T0)}")
                a(f"v_cvt_pk_bf16_f32 {v(g_)}, 0, {v(g_)}\nv_mul_f32 {v(g_)}, {v(g_)}, {v(u_)}\nv_cvt_pk_bf16_f32 {v(g_)}, {v(g_)}, {v(g_)}")
                a(f"v_and_b32 {v(T0)}, 31, v0\nv_lshl_add_u32 {v(T0)}, {v(T0)}, 1, {e}\nv_mul_u32_u24 {v(T1)}, 57, {v(T0)}\nv_lshrrev_b32 {v(T1)}, 9, {v(T1)}")
                a(f"v_mul_u32_u24 {v(vT[2])}, 9, {v(T1)}\nv_sub_u32 {v(T0)}, {v(T0)}, {v(vT[2])}\nv_lshlrev_b32 {v(T0)}, 1, {v(T0)}\nv_lshl_add_u32 {v(T0)}, {v(T1)}, 5, {v(T0)}")
                a(f"v_lshrrev_b32 {v(T1)}, 5, v0\nv_lshl_add_u32 {v(T0)}, {v(T1)}, 7, {v(T0)}")
                a(f"s_mov_b64 s[70:71], exec\ns_mov_b64 exec, s[68:69]\nds_write_b16 {v(T0)}, {v(g_)} offset:{L_H}\ns_mov_b64 exec, s[70:71]")
            a.label("L_noh2")
    while len(w2ops)<9 or len(woops)<8: issue_tail()
    for x in PK: V.release(x)
    stamp()
    for r in range(4): a(f"v_mul_f32 {v(vAcc2+r)}, {v(vAcc2+r)}, {v(vF)}")
    a(f"s_lshl_b32 s{sT1}, s{sW}, 10\nv_add_u32 {v(vT[0])}, s{sT1}, {v(vRed)}")
    a(f"ds_write_b128 {v(vT[0])}, {v(vAcc2,4)} offset:{L_OR}\ns_waitcnt lgkmcnt(0)\ns_barrier")
    V.release(vF)
    vOG=[V.alloc() for _ in range(8)]; vSt=V.alloc(4,2); vWt=[V.alloc(4,2) for _ in range(2)]
    RR=[V.alloc(4,2) for _ in range(4)]
    a(f"s_cmp_lg_u32 s{sW}, 0\ns_cbranch_scc1 L_noo1")
    for ww in range(4): a(f"ds_read_b128 {v(RR[ww],4)}, {v(vVoff)} offset:{L_OR+1024*ww}")
    a(f"v_lshrrev_b32 {v(vT[0])}, 3, v0\nv_and_b32 {v(vT[1])}, 7, v0\nv_lshlrev_b32 {v(vT[1])}, 4, {v(vT[1])}\nv_lshl_add_u32 {v(vT[0])}, {v(vT[0])}, 11, {v(vT[1])}")
    a(f"s_lshl_b32 s{sT1}, s{sKVH}, 14\ns_lshl_b32 s{sT2}, s{sSP}, 8\ns_add_u32 s{sT1}, s{sT1}, s{sT2}\ns_lshl_b32 s{sT2}, s{sB}, 7\ns_add_u32 s{sT1}, s{sT1}, s{sT2}\ns_add_u32 s{sT1}, s{sT1}, {WS_O}")
    a("s_waitcnt lgkmcnt(0)")
    for r in range(4):
        a(f"v_add_f32 {v(RR[0]+r)}, {v(RR[0]+r)}, {v(RR[1]+r)}\nv_add_f32 {v(RR[2]+r)}, {v(RR[2]+r)}, {v(RR[3]+r)}")
    for r in range(4):
        a(f"v_add_f32 {v(RR[0]+r)}, {v(RR[0]+r)}, {v(RR[2]+r)}\nv_and_or_b32 {v(RR[0]+r)}, {v(RR[0]+r)}, {v(vM24)}, s{sT8}")
    a.vmop(f"buffer_store_dwordx4 {v(RR[0],4)}, {v(vT[0])}, {srd(SRD_WS)}, s{sT1} offen sc1", role='w0')
    a(f"v_cmp_gt_u32 vcc, 16, v0\nv_mov_b32 {v(vT[1])}, {OOB}\nv_cndmask_b32 {v(vT[2])}, {v(vT[1])}, {v(vVoff)}, vcc")
    def stissue(shadow):
        a(f"s_lshl_b32 s{sT1}, s{sKVH}, 8\ns_add_u32 s{sT1}, s{sT1}, {WS_ST}")
        t=f"buffer_load_dwordx4 {v(vSt,4)}, {v(vT[2])}, {srd(SRD_WS)}, s{sT1} offen sc1"
        if shadow: a.shadow(t); return None
        return a.vmop(t, role='w0')
    stop=stissue(False)
    a(f"v_lshlrev_b32 {v(vT[3])}, 2, v0")
    def ogissue(shadow):
        a(f"s_lshl_b32 s{sT1}, s{sRB}, 11\ns_add_u32 s{sT1}, s{sT1}, {WS_O}")
        ops=[]
        for k in range(8):
            t=f"buffer_load_dword {v(vOG[k])}, {v(vT[3])}, {srd(SRD_WS)}, s{sT1} offen offset:{256*k} sc1"
            if shadow: a.shadow(t)
            else: ops.append(a.vmop(t, role='w0'))
        return ops
    ogops=ogissue(False)
    a.label("L_noo1")
    stamp()
    vHA=V.alloc(4,2); vHB=V.alloc()
    a(f"v_lshrrev_b32 {v(vHB)}, 3, {v(vN)}\nv_lshlrev_b32 {v(vHB)}, 7, {v(vHB)}\nv_lshl_add_u32 {v(vHB)}, {v(vG)}, 5, {v(vHB)}")
    a(f"ds_read_b128 {v(vHA,4)}, {v(vHB)} offset:{L_H}\nds_read_b32 {v(vHB)}, {v(vHB)} offset:{L_H+16}\ns_waitcnt lgkmcnt(0)")
    vAccG=V.alloc(4,2)
    for t in range(9):
        src = vHA+t//2 if t<8 else vHB
        abuild(vA[t%2], src, t%2)
        a.waitvm(w2ops[t])
        a(f"v_mfma_f32_16x16x32_bf16 {v(vAccG,4)}, {v(vA[t%2],4)}, {v(vW2[t],4)}, {'0' if t==0 else v(vAccG,4)}")
    for r in range(4): a(f"v_and_or_b32 {v(vAccG+r)}, {v(vAccG+r)}, {v(vM24)}, s{sT8}")
    a(f"s_lshl_b32 s{sT1}, s{sRB2}, 6\ns_add_u32 s{sT1}, s{sT1}, {WS_GP}")
    a.vmop(f"buffer_store_dwordx4 {v(vAccG,4)}, {v(vPub)}, {srd(SRD_WS)}, s{sT1} offen sc1")
    V.release(vHA,4); V.release(vHB)
    for x in vW2: V.release(x,4)
    stamp()
    a(f"s_cmp_lg_u32 s{sW}, 0\ns_cbranch_scc1 L_noo2")
    a.waitvm(stop, ('w0',))
    a.label("L_stchk")
    T0,T1=vT[0],vT[1]
    a(f"v_bitop3_b32 {v(T0)}, {v(vSt)}, {v(vSt+1)}, {v(vSt+2)} bitop3:0x80\nv_and_b32 {v(T0)}, {v(T0)}, {v(vSt+3)}\nv_or3_b32 {v(T1)}, {v(vSt)}, {v(vSt+1)}, {v(vSt+2)}\nv_or_b32 {v(T1)}, {v(T1)}, {v(vSt+3)}")
    a(f"v_and_b32 {v(T0)}, 255, {v(T0)}\nv_and_b32 {v(T1)}, 255, {v(T1)}\nv_cmp_gt_u32 s[68:69], 16, v0")
    a(f"v_cmp_ne_u32 vcc, s{sT8}, {v(T0)}\nv_cmp_ne_u32 s[70:71], s{sT8}, {v(T1)}\ns_or_b64 s[70:71], s[70:71], vcc\ns_and_b64 s[70:71], s[70:71], s[68:69]\ns_cbranch_scc0 L_stok")
    a(f"s_cmp_eq_u32 s{sCNT}, 0\ns_cbranch_scc1 L_stok\ns_sub_u32 s{sCNT}, s{sCNT}, 1")
    stissue(True)
    a("s_waitcnt vmcnt(0)\ns_branch L_stchk")
    a.label("L_stok")
    a(f"s_cmp_eq_u32 s{sB}, 0\ns_cbranch_scc1 L_h0\nv_mov_b32 {v(vSt)}, {v(vSt+2)}\nv_mov_b32 {v(vSt+1)}, {v(vSt+3)}")
    a.label("L_h0")
    a(f"v_and_b32 {v(vSt)}, {v(vSt)}, {v(vM24)}\nv_and_b32 {v(vSt+1)}, {v(vSt+1)}, {v(vM24)}\nv_mov_b32 {v(vSt+2)}, {v(vSt)}")
    def red8(x,op):
        for m in ["quad_perm:[1,0,3,2]","quad_perm:[2,3,0,1]","row_half_mirror"]:
            a(f"v_{op}_f32_dpp {v(x)}, {v(x)}, {v(x)} {m} row_mask:0xf bank_mask:0xf")
    red8(vSt+2,"max")
    a(f"v_sub_f32 {v(vSt)}, {v(vSt)}, {v(vSt+2)}\nv_mul_f32 {v(vSt)}, s{sLOG2E}, {v(vSt)}\nv_exp_f32 {v(vSt)}, {v(vSt)}\nv_mul_f32 {v(vSt+1)}, {v(vSt+1)}, {v(vSt)}")
    red8(vSt+1,"add")
    a(f"v_rcp_f32 {v(vSt+3)}, {v(vSt+1)}\nv_mul_f32 {v(vSt+2)}, {v(vSt)}, {v(vSt+3)}\nv_fma_f32 {v(vSt)}, -{v(vSt+2)}, {v(vSt+1)}, {v(vSt)}\nv_fma_f32 {v(vSt)}, {v(vSt)}, {v(vSt+3)}, {v(vSt+2)}")
    a(f"v_lshlrev_b32 {v(T0)}, 2, v0\ns_mov_b64 s[70:71], exec\ns_mov_b64 exec, s[68:69]\nds_write_b32 {v(T0)}, {v(vSt)} offset:{L_WG}\ns_mov_b64 exec, s[70:71]\ns_waitcnt lgkmcnt(0)")
    a(f"v_lshrrev_b32 {v(T0)}, 5, v0\nv_lshlrev_b32 {v(T0)}, 5, {v(T0)}\nds_read_b128 {v(vWt[0],4)}, {v(T0)} offset:{L_WG}\nds_read_b128 {v(vWt[1],4)}, {v(T0)} offset:{L_WG+16}")
    a.waitvm(ogops[7], ('w0',))
    a.label("L_ochk")
    a(f"v_bitop3_b32 {v(T0)}, {v(vOG[0])}, {v(vOG[1])}, {v(vOG[2])} bitop3:0x80\nv_bitop3_b32 {v(T0)}, {v(T0)}, {v(vOG[3])}, {v(vOG[4])} bitop3:0x80\nv_bitop3_b32 {v(T0)}, {v(T0)}, {v(vOG[5])}, {v(vOG[6])} bitop3:0x80\nv_and_b32 {v(T0)}, {v(T0)}, {v(vOG[7])}")
    a(f"v_or3_b32 {v(T1)}, {v(vOG[0])}, {v(vOG[1])}, {v(vOG[2])}\nv_or3_b32 {v(T1)}, {v(T1)}, {v(vOG[3])}, {v(vOG[4])}\nv_or3_b32 {v(T1)}, {v(T1)}, {v(vOG[5])}, {v(vOG[6])}\nv_or_b32 {v(T1)}, {v(T1)}, {v(vOG[7])}")
    a(f"v_and_b32 {v(T0)}, 255, {v(T0)}\nv_and_b32 {v(T1)}, 255, {v(T1)}")
    a(f"v_cmp_ne_u32 vcc, s{sT8}, {v(T0)}\nv_cmp_ne_u32 s[70:71], s{sT8}, {v(T1)}\ns_or_b64 s[70:71], s[70:71], vcc\ns_cbranch_scc0 L_ook")
    a(f"s_cmp_eq_u32 s{sCNT}, 0\ns_cbranch_scc1 L_ook\ns_sub_u32 s{sCNT}, s{sCNT}, 1")
    ogissue(True)
    a("s_waitcnt vmcnt(0)\ns_branch L_ochk")
    a.label("L_ook")
    a("s_waitcnt lgkmcnt(0)")
    for k in range(8):
        w=vWt[k//4]+k%4
        a(f"v_and_b32 {v(vOG[k])}, {v(vOG[k])}, {v(vM24)}")
        if k<2: a(f"v_mul_f32 {v([T0,T1][k])}, {v(vOG[k])}, {v(w)}")
        else: a(f"v_fmac_f32 {v([T0,T1][k%2])}, {v(vOG[k])}, {v(w)}")
    a(f"v_add_f32 {v(T0)}, {v(T0)}, {v(T1)}\nv_cvt_pk_bf16_f32 {v(T0)}, {v(T0)}, {v(T0)}\nv_lshlrev_b32 {v(T1)}, 1, v0\nds_write_b16 {v(T1)}, {v(T0)} offset:{L_O}\ns_waitcnt lgkmcnt(0)")
    a.label("L_noo2")
    a("s_barrier")
    stamp()
    vOA=RR[1]
    a(f"v_lshrrev_b32 {v(vT[0])}, 3, {v(vN)}\nv_lshlrev_b32 {v(vT[0])}, 6, {v(vT[0])}\nv_lshl_add_u32 {v(vT[0])}, {v(vG)}, 4, {v(vT[0])}\nds_read_b128 {v(vOA,4)}, {v(vT[0])} offset:{L_O}")
    a.waitvm(woops[7])
    a("s_waitcnt lgkmcnt(0)")
    vAccS=RR[2]
    for t in range(8):
        abuild(vA[t%2], vOA+t//2, t%2)
        a(f"v_mfma_f32_16x16x32_bf16 {v(vAccS,4)}, {v(vA[t%2],4)}, {v(vWO[t],4)}, {'0' if t==0 else v(vAccS,4)}")
    a(f"s_lshl_b32 s{sT1}, s{sRB}, 6\ns_add_u32 s{sT1}, s{sT1}, {WS_S}")
    for r in range(4): a(f"v_and_or_b32 {v(vAccS+r)}, {v(vAccS+r)}, {v(vM24)}, s{sT8}")
    a.vmop(f"buffer_store_dwordx4 {v(vAccS,4)}, {v(vPub)}, {srd(SRD_WS)}, s{sT1} offen sc1")
    stamp()
    a(f"s_cmp_lt_u32 s2, {FIN0}\ns_cbranch_scc1 L_done")
    a(f"s_sub_u32 s{sUNIT}, s2, {FIN0}")
    mksrd(SRD_X,4,2304); mksrd(SRD_OUT,22,2304)
    GG=[vWO[0],vWO[1]]; SS=[vWO[2],vWO[3]]; vXr=vT[5]
    vOut=V.alloc()
    a(f"s_lshl_b32 s{sT1}, s{sUNIT}, 5\nv_lshl_add_u32 {v(vOut)}, v0, 1, s{sT1}\nv_cmp_gt_u32 vcc, 16, v0\nv_mov_b32 {v(vT[0])}, {OOB}\nv_cndmask_b32 {v(vOut)}, {v(vT[0])}, {v(vOut)}, vcc")
    xop=a.vmop(f"buffer_load_ushort {v(vXr)}, {v(vOut)}, {srd(SRD_X)}, 0 offen", role='fin')
    def fissue(regs, base, shadow):
        a(f"s_lshl_b32 s{sT1}, s{sUNIT}, 13\ns_lshl_b32 s{sT2}, s{sW}, 11\ns_add_u32 s{sT1}, s{sT1}, s{sT2}\ns_add_u32 s{sT1}, s{sT1}, {base}")
        ops=[]
        for k in range(2):
            t=f"buffer_load_dwordx4 {v(regs[k],4)}, {v(vVoff)}, {srd(SRD_WS)}, s{sT1} offen offset:{1024*k} sc1"
            if shadow: a.shadow(t)
            else: ops.append(a.vmop(t, role='fin'))
        return ops
    gops=fissue(GG,WS_GP,False); sops=fissue(SS,WS_S,False)
    def fcheck_reduce(name, regs, base, op, ldsoff):
        a.waitvm(op, ('fin',))
        a.label(f"L_{name}chk")
        A_,B_=regs
        T0,T1=vT[0],vT[1]
        a(f"v_bitop3_b32 {v(T0)}, {v(A_)}, {v(A_+1)}, {v(A_+2)} bitop3:0x80\nv_bitop3_b32 {v(T0)}, {v(T0)}, {v(A_+3)}, {v(B_)} bitop3:0x80\nv_bitop3_b32 {v(T0)}, {v(T0)}, {v(B_+1)}, {v(B_+2)} bitop3:0x80\nv_and_b32 {v(T0)}, {v(T0)}, {v(B_+3)}")
        a(f"v_or3_b32 {v(T1)}, {v(A_)}, {v(A_+1)}, {v(A_+2)}\nv_or3_b32 {v(T1)}, {v(T1)}, {v(A_+3)}, {v(B_)}\nv_or3_b32 {v(T1)}, {v(T1)}, {v(B_+1)}, {v(B_+2)}\nv_or_b32 {v(T1)}, {v(T1)}, {v(B_+3)}")
        a(f"v_and_b32 {v(T0)}, 255, {v(T0)}\nv_and_b32 {v(T1)}, 255, {v(T1)}")
        a(f"v_cmp_ne_u32 vcc, s{sT8}, {v(T0)}\nv_cmp_ne_u32 s[70:71], s{sT8}, {v(T1)}\ns_or_b64 s[70:71], s[70:71], vcc\ns_cbranch_scc0 L_{name}ok")
        a(f"s_cmp_eq_u32 s{sCNT}, 0\ns_cbranch_scc1 L_{name}ok\ns_sub_u32 s{sCNT}, s{sCNT}, 1")
        fissue(regs,base,True)
        a(f"s_waitcnt vmcnt(0)\ns_branch L_{name}chk")
        a.label(f"L_{name}ok")
        for r in range(4):
            a(f"v_and_b32 {v(A_+r)}, {v(A_+r)}, {v(vM24)}\nv_and_b32 {v(B_+r)}, {v(B_+r)}, {v(vM24)}")
        for r in range(4): a(f"v_add_f32 {v(A_+r)}, {v(A_+r)}, {v(B_+r)}")
        for m in ["row_ror:4","row_ror:8"]:
            for r in range(4): a(f"v_add_f32_dpp {v(A_+r)}, {v(A_+r)}, {v(A_+r)} {m} row_mask:0xf bank_mask:0xf")
        a(f"v_permlane16_swap_b32 {v(A_)}, {v(A_+1)}\nv_permlane16_swap_b32 {v(A_+2)}, {v(A_+3)}")
        a(f"v_add_f32 {v(A_)}, {v(A_)}, {v(A_+1)}\nv_add_f32 {v(A_+2)}, {v(A_+2)}, {v(A_+3)}")
        a(f"v_permlane32_swap_b32 {v(A_)}, {v(A_+2)}\nv_add_f32 {v(A_)}, {v(A_)}, {v(A_+2)}")
        a(f"ds_write_b32 {v(vT[2])}, {v(A_)} offset:{L_F+ldsoff}")
    a(f"v_and_b32 {v(vT[2])}, 3, v0\nv_lshl_add_u32 {v(vT[2])}, {v(vT[2])}, 2, {v(vG)}\ns_lshl_b32 s{sT1}, s{sW}, 2\nv_lshl_add_u32 {v(vT[2])}, {v(vT[2])}, 4, s{sT1}")
    fcheck_reduce("g",GG,WS_GP,gops[1],0)
    fcheck_reduce("s",SS,WS_S,sops[1],256)
    a("s_waitcnt lgkmcnt(0)\ns_barrier")
    a(f"s_cmp_lg_u32 s{sW}, 0\ns_cbranch_scc1 L_done")
    Fg=vWO[4]; Fs=vWO[5]
    a(f"v_and_b32 {v(vT[0])}, 15, v0\nv_lshlrev_b32 {v(vT[0])}, 4, {v(vT[0])}\nds_read_b128 {v(Fg,4)}, {v(vT[0])} offset:{L_F}\nds_read_b128 {v(Fs,4)}, {v(vT[0])} offset:{L_F+256}\ns_waitcnt lgkmcnt(0)")
    for F_ in (Fg,Fs):
        a(f"v_add_f32 {v(F_)}, {v(F_)}, {v(F_+1)}\nv_add_f32 {v(F_+2)}, {v(F_+2)}, {v(F_+3)}\nv_add_f32 {v(F_)}, {v(F_)}, {v(F_+2)}\nv_cvt_pk_bf16_f32 {v(F_)}, 0, {v(F_)}")
    a(f"v_mul_f32 {v(vT[0])}, s{sLOG2E}, {v(Fg)}\nv_exp_f32 {v(vT[0])}, -{v(vT[0])}\nv_add_f32 {v(vT[0])}, 1.0, {v(vT[0])}\nv_rcp_f32 {v(vT[0])}, {v(vT[0])}\nv_mul_f32 {v(Fg)}, {v(Fg)}, {v(vT[0])}\nv_cvt_pk_bf16_f32 {v(Fg)}, 0, {v(Fg)}")
    a(f"v_mul_f32 {v(Fs)}, {v(Fs)}, {v(Fg)}\nv_cvt_pk_bf16_f32 {v(Fs)}, 0, {v(Fs)}\nv_lshlrev_b32 {v(vXr)}, 16, {v(vXr)}\nv_add_f32 {v(Fs)}, {v(Fs)}, {v(vXr)}\nv_cvt_pk_bf16_f32 {v(Fs)}, {v(Fs)}, {v(Fs)}")
    a.vmop(f"buffer_store_short {v(Fs)}, {v(vOut)}, {srd(SRD_OUT)}, 0 offen", role='fin')
    a(f"s_cmp_lg_u32 s{sUNIT}, 0\ns_cbranch_scc1 L_done")
    a(f"v_cmp_eq_u32 vcc, 0, v0\nv_mov_b32 {v(vT[1])}, {OOB}\nv_cndmask_b32 {v(vT[1])}, {v(vT[1])}, 0, vcc\nv_mov_b32 {v(vT[0])}, s{sT32}")
    a.vmop(f"buffer_store_dword {v(vT[0])}, {v(vT[1])}, {srd(SRD_WS)}, 0 offen sc1", role='fin')
    a.label("L_done")
    if stamps:
        stamp()
        n=nst[0]
        if stamps=='dbg':
            a(f"s_waitcnt vmcnt(0)\nv_cmp_eq_u32 vcc, 0, v0\ns_and_saveexec_b64 s[70:71], vcc\nv_mov_b32 {v(vT[1])}, 0")
            a(f"s_not_b32 s{sT1}, s{STREG[0]}\nv_mov_b32 {v(vT[0])}, s{sT1}")
            a.vmop(f"global_atomic_umax {v(vT[1])}, {v(vT[0])}, s[24:25]", role='dbg')
            for k in range(n):
                a(f"v_mov_b32 {v(vT[0])}, s{STREG[k]}")
                a.vmop(f"global_atomic_umax {v(vT[1])}, {v(vT[0])}, s[24:25] offset:{4*(k+1)}", role='dbg')
            a(f"s_mov_b64 exec, s[70:71]")
        a(f"s_lshl_b32 s{sT1}, s2, 2\ns_add_u32 s{sT1}, s{sT1}, s{sW}\ns_lshl_b32 s{sT1}, s{sT1}, 6\ns_add_u32 s{sT1}, s{sT1}, {WS_STAMP}")
        a(f"v_cmp_eq_u32 vcc, 0, v0\nv_mov_b32 {v(vT[1])}, {OOB}\nv_cndmask_b32 {v(vT[1])}, {v(vT[1])}, 0, vcc")
        for k in range(n):
            a(f"v_mov_b32 {v(vT[0])}, s{STREG[k]}")
            a.vmop(f"buffer_store_dword {v(vT[0])}, {v(vT[1])}, {srd(SRD_WS)}, s{sT1} offen offset:{4*k}", role='dbg')
    a("s_waitcnt vmcnt(0)")
    a.label("L_end")
    a("s_endpgm")
    a.label("L_codelast")
    a("s_nop 0\ns_nop 0\ns_nop 0\ns_nop 0")
    body,nn=a.finish()
    hdr=open('recurrent_scan__sliding_block_cached__glu_gated_swiglu__decode.s.ref').read().split('\n')
    head=[l for l in hdr if l.startswith(';') and '@launch' not in l and 'Override launch' not in l and 'grid=ceil' not in l]
    head=head[:13]
    out=head+[f"; @launch grid=(256,1,1) block=(256,1,1) lds={LDS_BYTES}",
        '.amdgcn_target "amdgcn-amd-amdhsa--gfx950"','.text',f'.globl {KNAME}','.p2align 12',f'.type {KNAME},@function',f'{KNAME}:']
    out+=["    "+l if not l.endswith(':') else l for l in body]
    out+=['.section .rodata,"a"','.p2align 6',f'.amdhsa_kernel {KNAME}','  .amdhsa_next_free_vgpr 512','  .amdhsa_next_free_sgpr 102','  .amdhsa_accum_offset 256',
          '  .amdhsa_group_segment_fixed_size 0','  .amdhsa_kernarg_size 96','  .amdhsa_user_sgpr_count 2','  .amdhsa_user_sgpr_kernarg_segment_ptr 1',
          '  .amdhsa_system_sgpr_workgroup_id_x 1','  .amdhsa_float_denorm_mode_32 3','.end_amdhsa_kernel']
    info=dict(ninstr=len(body), nops=nn, vhw=V.hw, nstamps=nst[0], k0=k0)
    return "\n".join(out)+"\n", info

if __name__=="__main__":
    kw=json.loads(sys.argv[2]) if len(sys.argv)>2 else {}
    s,info=gen(**kw)
    open(sys.argv[1],"w").write(s)
    print(info)
```
